```python
import torch

def _softmax(x, axis=-1):
    return torch.softmax(x, dim=axis)
def _gelu(x):
    return torch.nn.functional.gelu(x, approximate="tanh")
def _silu(x):
    return torch.nn.functional.silu(x)
def _sigmoid(x):
    return torch.sigmoid(x)
def _layernorm(x, axis=-1, eps=1e-5):
    m = x.mean(dim=axis, keepdim=True)
    v = x.var(dim=axis, keepdim=True, unbiased=False)
    return (x - m) / torch.sqrt(v + eps)
def _scatter_add(tgt, idx, src, axis=0):
    return tgt.clone().index_add_(axis, idx, src)
def _segment_sum(src, seg, n):
    out = torch.zeros((n,) + src.shape[1:], dtype=src.dtype)
    return out.index_add_(0, seg, src)
def _pad(x, pw):
    flat = tuple(v for pair in reversed(pw) for v in pair)
    return torch.nn.functional.pad(x, flat)

kernel_name = 'standalone__gqa_softmax__near_ridge'

def setup_inputs():

    _w = (lambda a: (lambda t: t.to(torch.bfloat16) if t.is_floating_point() else t)(torch.as_tensor(a)))
    B, Hq, Hkv, Sq, Sk, D = 8, 32, 32, 288, 512, 192
    return {
        "q": _w((lambda *s: torch.randn(*s, dtype=torch.bfloat16) * 0.8)(B, Hq, Sq, D)),
        "k": _w((lambda *s: torch.randn(*s, dtype=torch.bfloat16) * 0.8)(B, Hkv, Sk, D)),
        "v": _w((lambda *s: torch.randn(*s, dtype=torch.bfloat16) * 0.05)(B, Hkv, Sk, D)),
    }

def reference(q, k, v):
    B, Hq, Sq, D = q.shape
    Hkv = k.shape[1]
    rep = Hq // Hkv
    k = (lambda x, n, axis: torch.repeat_interleave(x, n, dim=axis))(k, rep, axis=1)
    v = (lambda x, n, axis: torch.repeat_interleave(x, n, dim=axis))(v, rep, axis=1)
    scale = D ** -0.5
    scores = torch.einsum("bhqd,bhkd->bhqk", q, k) * scale
    p = _softmax(scores, axis=-1)
    return torch.einsum("bhqk,bhkd->bhqd", p, v)
```

```python
class Reg:
    def __init__(self, f, i, n=1):
        self.f, self.i, self.n = f, i, n

    def __str__(self):
        return f"{self.f}{self.i}" if self.n == 1 else f"{self.f}[{self.i}:{self.i + self.n - 1}]"

    def names(self):
        return [f"{self.f}{self.i + k}" for k in range(self.n)]

    def __getitem__(self, k):
        if isinstance(k, slice):
            a = k.start or 0
            b = k.stop if k.stop is not None else self.n
            assert 0 <= a < b <= self.n, (a, b, self.n)
            return Reg(self.f, self.i + a, b - a)
        assert 0 <= k < self.n, (k, self.n)
        return Reg(self.f, self.i + k, 1)


def V(i, n=1):
    return Reg("v", i, n)


def A(i, n=1):
    return Reg("a", i, n)


def S(i, n=1):
    return Reg("s", i, n)


def _names(x):
    if isinstance(x, Reg):
        return x.names()
    if isinstance(x, str):
        y = x.lstrip("-")
        if y in ("vcc", "scc", "m0", "exec"):
            return [y]
        return []
    if isinstance(x, Neg):
        return x.r.names()
    return []


class Neg:
    def __init__(self, r):
        self.r = r

    def __str__(self):
        return "-" + str(self.r)


COST = dict(mfma8=8, mfma4=8, valu=4, trans=8, perm=4, dsr=4, dsw=8, dma=16, vst=16, salu=4, wait=4, nop=4,
            bar=4, br=4, label=0, smem=4, comment=0)


class Ins:
    def __init__(self, txt, kind, rd=(), wr=(), cost=None, srcc=None):
        self.txt, self.kind = txt, kind
        self.rd = set(rd)
        self.wr = set(wr)
        self.cost = COST[kind] if cost is None else cost
        self.srcc = srcc
        self.states = 1
        self.lgkm = None
        self.vm = None

    def __repr__(self):
        return self.txt


def fmt(x):
    if isinstance(x, int):
        return str(x) if -16 <= x <= 64 else hex(x & 0xFFFFFFFF)
    return str(x)


def valu(op, dst, *src, kind="valu", extra="", rd_extra=(), wr_extra=()):
    rd = []
    for s in src:
        rd += _names(s)
    txt = f"{op} {fmt(dst)}, " + ", ".join(fmt(s) for s in src) + (" " + extra if extra else "")
    return Ins(txt, kind, rd + list(rd_extra), _names(dst) + list(wr_extra))


def trans(op, dst, src):
    return valu(op, dst, src, kind="trans")


def salu(op, dst, *src, scc=True, rd_scc=False):
    rd = []
    for s in src:
        rd += _names(s)
    if rd_scc:
        rd.append("scc")
    wr = _names(dst) + (["scc"] if scc else [])
    return Ins(f"{op} {fmt(dst)}, " + ", ".join(fmt(s) for s in src), "salu", rd, wr)


def smov(dst, src):
    return salu("s_mov_b32", dst, src, scc=False)


def scmp(op, a, b):
    return Ins(f"{op} {fmt(a)}, {fmt(b)}", "salu", _names(a) + _names(b), ["scc"])


def mfma32(d, a, b, c):
    cn = _names(c)
    return Ins(f"v_mfma_f32_32x32x16_bf16 {d}, {a}, {b}, {fmt(c)}", "mfma8", a.names() + b.names() + cn, d.names(),
               srcc=cn)


def mfma16(d, a, b, c):
    cn = _names(c)
    return Ins(f"v_mfma_f32_16x16x32_bf16 {d}, {a}, {b}, {fmt(c)}", "mfma4", a.names() + b.names() + cn, d.names(),
               srcc=cn)


def _off(o):
    assert 0 <= o <= 65535, o
    return f" offset:{o}" if o else ""


def dsr128(d, addr, off=0):
    return Ins(f"ds_read_b128 {d}, {addr}{_off(off)}", "dsr", addr.names(), d.names())


def dsr64(d, addr, off=0):
    return Ins(f"ds_read_b64 {d}, {addr}{_off(off)}", "dsr", addr.names(), d.names())


def dsrtr(d, addr, off=0):
    return Ins(f"ds_read_b64_tr_b16 {d}, {addr}{_off(off)}", "dsr", addr.names(), d.names())


def dsw128(addr, s, off=0):
    return Ins(f"ds_write_b128 {addr}, {s}{_off(off)}", "dsw", addr.names() + s.names(), [])


def dsw64(addr, s, off=0):
    return Ins(f"ds_write_b64 {addr}, {s}{_off(off)}", "dsw", addr.names() + s.names(), [])


def dma(voff, srd, soff, off=0, flag=""):
    assert 0 <= off <= 4095
    o = f" offset:{off}" if off else ""
    fl = f" {flag}" if flag else ""
    return Ins(f"buffer_load_dwordx4 {voff}, {srd}, {fmt(soff)} offen{o}{fl} lds", "dma",
               voff.names() + srd.names() + _names(soff) + ["m0"], [])


def vstore(data, voff, srd, soff, off=0, flag="", op="buffer_store_dwordx4"):
    assert 0 <= off <= 4095
    o = f" offset:{off}" if off else ""
    fl = f" {flag}" if flag else ""
    i = Ins(f"{op} {data}, {voff}, {srd}, {fmt(soff)} offen{o}{fl}", "vst",
            data.names() + voff.names() + srd.names() + _names(soff), [])
    i.data = set(data.names())
    return i


def wait(vm=None, lgkm=None):
    t = "s_waitcnt"
    if vm is not None:
        assert 0 <= vm <= 63
        t += f" vmcnt({vm})"
    if lgkm is not None:
        assert 0 <= lgkm <= 15
        t += f" lgkmcnt({lgkm})"
    i = Ins(t, "wait")
    i.lgkm, i.vm = lgkm, vm
    return i


def nop(n):
    assert 1 <= n <= 16
    i = Ins(f"s_nop {n - 1}", "nop", cost=4 * n)
    i.states = n
    return i


def barrier():
    return Ins("s_barrier", "bar")


def branch(op, label, rd=()):
    return Ins(f"{op} {label}", "br", rd)


def label(name):
    i = Ins(f"{name}:", "label")
    i.states = 0
    return i


def comment(t):
    i = Ins(f"; {t}", "comment")
    i.states = 0
    return i


def raw(txt, kind="salu", rd=(), wr=()):
    return Ins(txt, kind, rd, wr)


def swap32(a, b):
    return Ins(f"v_permlane32_swap_b32 {a}, {b}", "perm", a.names() + b.names(), a.names() + b.names())


def swap16(a, b):
    return Ins(f"v_permlane16_swap_b32 {a}, {b}", "perm", a.names() + b.names(), a.names() + b.names())


VALU_KINDS = ("valu", "trans", "perm")
MFMA_KINDS = ("mfma8", "mfma4")


def is_vreg(n):
    return n[0] in "va" and n[1:].isdigit()


def is_sreg(n):
    return (n[0] == "s" and n[1:].isdigit()) or n == "vcc"


def need_states(p, c):
    n = 0
    pk, ck = p.kind, c.kind
    if pk in VALU_KINDS:
        pw = {x for x in p.wr if is_vreg(x)}
        ps = {x for x in p.wr if is_sreg(x)}
        if ck in MFMA_KINDS and pw & c.rd:
            n = max(n, 2)
        if ck == "perm" and pw & c.rd:
            n = max(n, 2)
        if pk == "trans" and ck in ("valu", "perm") and pw & (c.rd | c.wr):
            n = max(n, 1)
        if pk == "trans" and ck in ("dsw", "vst", "dsr", "dma") and pw & c.rd:
            n = max(n, 1)
        if ck in VALU_KINDS and ("readfirstlane" in c.txt or "readlane" in c.txt) and pw & c.rd:
            n = max(n, 1)
        if ck in VALU_KINDS and ps & c.rd:
            n = max(n, 4 if ("readlane" in c.txt or "writelane" in c.txt) else 2)
        if ck in ("dma", "vst") and ps & c.rd:
            n = max(n, 5)
        if ck == "salu" and ps & c.rd:
            n = max(n, 1)
        if "exec" in p.wr and ck in MFMA_KINDS:
            n = max(n, 4)
    if pk in MFMA_KINDS:
        big = pk == "mfma8"
        d = p.wr
        if ck in MFMA_KINDS:
            ab = c.rd - set(c.srcc)
            if d & ab:
                n = max(n, 12 if big else 8)
            if d & set(c.srcc):
                if set(c.srcc) == d and ck == pk:
                    pass
                else:
                    n = max(n, 10 if big else 6)
            elif d & c.wr:
                n = max(n, 10 if big else 6)
        elif ck in VALU_KINDS:
            if d & (c.rd | c.wr):
                n = max(n, 12 if big else 8)
            if set(p.srcc) & c.wr:
                n = max(n, 7 if big else 3)
        elif ck in ("dsr", "dsw", "vst", "dma"):
            if d & (c.rd | c.wr):
                n = max(n, 12 if big else 8)
    if pk == "salu" and "m0" in p.wr and ck == "dma":
        n = max(n, 1)
    if pk == "salu" and "m0" in p.wr and ("movrel" in c.txt or "writelane" in c.txt) and "m0" in c.rd:
        n = max(n, 1)
    if pk == "vst" and ck in VALU_KINDS and p.data & c.wr:
        n = max(n, 2)
    if pk == "vst" and ck in ("dsr",) + MFMA_KINDS and p.data & c.wr:
        n = max(n, 1)
    return n


def required_pad(hist, c):
    dist = 0
    pad = 0
    for p in reversed(hist):
        if dist >= 24:
            break
        n = need_states(p, c)
        if n > dist:
            pad = max(pad, n - dist)
        dist += p.states
    return pad


def finalize(seq, pend=None, hist=None, old=24, log=None):
    out = list(hist or [])
    nh = len(out)
    pend = [[set(p), -1000] for p in (pend or [])]
    pos = 0
    for ins in seq:
        if ins.kind == "wait" and ins.lgkm is not None:
            if len(pend) > ins.lgkm:
                pend = pend[len(pend) - ins.lgkm:] if ins.lgkm else []
        elif ins.kind not in ("label", "comment"):
            touch = ins.rd | ins.wr
            k = -1
            for i, (d, _) in enumerate(pend):
                if d & touch:
                    k = i
            if k >= 0:
                while k + 1 < len(pend) and pos - pend[k + 1][1] >= old * 4:
                    k += 1
                n = len(pend) - 1 - k
                w = wait(lgkm=min(n, 15))
                out.append(w)
                pos += w.cost
                pend = pend[len(pend) - min(n, 15):] if n else []
        if ins.kind not in ("label", "comment"):
            pad = required_pad(out, ins)
            if pad:
                if log is not None:
                    log.append(f"pad {pad} before: {ins.txt}")
                while pad > 0:
                    q = min(pad, 16)
                    out.append(nop(q))
                    pos += 4 * q
                    pad -= q
        out.append(ins)
        pos += max(ins.cost, 16 if ins.kind == "mfma8" else 0)
        if ins.kind in ("dsr", "dsw"):
            pend.append([set(ins.wr), pos])
    return out[nh:], [p[0] for p in pend]


def check_path(name, *blocks):
    seq = []
    for b in blocks:
        seq += b
    bad = 0
    for i, c in enumerate(seq):
        if c.kind in ("label", "comment"):
            continue
        pad = required_pad(seq[max(0, i - 40):i], c)
        if pad:
            print(f"HAZARD on path {name}: need {pad} more states before [{i}] {c.txt}")
            bad += 1
    return bad


class Phase:
    def __init__(self, mfmas):
        self.m = mfmas
        self.gaps = [[] for _ in range(len(mfmas) + 1)]
        self.res = [0] * (len(mfmas) + 1)

    def cap(self, g):
        if g == 0:
            return 24
        return 24 if self.m[g - 1].kind == "mfma8" else 8

    def load(self, g):
        return sum(i.cost for i in self.gaps[g]) + self.res[g]

    def put(self, g, *ins):
        for i in ins:
            self.gaps[g].append(i)

    def spread(self, stream, g0, g1):
        gs = list(range(g0, g1 + 1))
        free = [max(self.cap(g) - self.load(g), 0) + 0.01 for g in gs]
        tot = sum(i.cost for i in stream)
        tf = sum(free)
        if tot > tf:
            ex = (tot - tf) / len(gs)
            free = [f + ex for f in free]
            tf = sum(free)
        k = 0
        acc = 0.0
        used = 0
        for g, f in zip(gs, free):
            acc += f * tot / tf
            while k < len(stream) and used + stream[k].cost / 2 <= acc:
                self.gaps[g].append(stream[k])
                used += stream[k].cost
                k += 1
        while k < len(stream):
            self.gaps[g1].append(stream[k])
            k += 1

    def emit(self):
        out = []
        for g in range(len(self.m)):
            out += self.gaps[g]
            out.append(self.m[g])
        out += self.gaps[len(self.m)]
        return out


def est_cycles(seq):
    t = 0
    pipe = 0
    for i in seq:
        if i.kind in MFMA_KINDS:
            t = max(t, pipe)
            pipe = t + (32 if i.kind == "mfma8" else 16)
            t += 8
        else:
            t += i.cost
    return max(t, pipe)
```

```python
import sys, struct, math
from asmlib import *

KN = "standalone__gqa_softmax__near_ridge_kernel"
SLOT = 12288
VRING = 6 * SLOT
Q9BASE = 12 * SLOT
MLBASE = 13 * SLOT
LDS_BYTES = 163840


def f32bits(x):
    return struct.unpack("<I", struct.pack("<f", x))[0]


O0 = [V(16 * d, 16) for d in range(6)]
O1 = [V(96 + 16 * d, 16) for d in range(3)] + [A(192 + 16 * d, 16) for d in range(3)]
O9 = [A(96 + 16 * d, 16) for d in range(6)]
S0 = V(144, 16)
S1 = {"a": V(160, 16), "b": V(176, 16)}
P0 = {"a": V(192, 8), "b": V(200, 8)}
P1 = V(208, 8)
P9 = V(216, 4)
F = [A(240, 4), A(244, 4), A(248, 4), A(252, 4), V(220, 4), V(224, 4), V(228, 4)]
vK = [V(232 + i) for i in range(4)]
vV = {(dbp, s): V(236 + dbp * 2 + s) for dbp in range(2) for s in range(2)}
vK16 = [V(240), V(241)]
vQ9 = [V(242), V(243)]
voffK, voffV = V(244), V(245)
M0r, M1r = V(246), V(247)
M9 = [V(248), V(249)]
L0, L1 = V(250), V(251)
L9 = [V(252), V(253)]
X0, X1 = V(254), V(255)
Q = [[A(t * 48 + ks * 4, 4) for ks in range(12)] for t in range(2)]

srdQ, srdK, srdV, srdO, srdW = S(12, 4), S(16, 4), S(20, 4), S(24, 4), S(28, 4)
sW, sC, sTHR, sU, sG, sDMA, sD, sPOS = S(32), S(33), S(34), S(35), S(36), S(37), S(38), S(39)
sT0, sT1, sT2, sT3 = S(40), S(41), S(42), S(43)
sW3072, sWodd = S(44), S(45)
sBIT4 = S(46, 2)
sST = S(50, 2)
sSI = S(52)


class Cfg:
    ld = "nt"
    st = ""
    stamps = False
    thr = 2.0 ** 24


def gen(cfg):
    logs = []

    def dma3(voff, srd, soff, base_sreg, const):
        out = []
        for t in range(3):
            out.append([salu("s_add_u32", "m0", base_sreg, const + t * 896), dma(voff, srd, soff, t * 128, cfg.ld)])
        return out

    def softmax16(Sr, Pr, Mr, T, ps):
        n = 16
        nt = len(T)
        out = []
        for k in range(-2, n):
            if k + 2 < n:
                out.append(valu("v_fma_f32", T[(k + 2) % nt], Sr[k + 2], sC, Neg(Mr)))
            if 0 <= k + 1 < n:
                out.append(trans("v_exp_f32", T[(k + 1) % nt], T[(k + 1) % nt]))
            if k == 1:
                out.append(valu("v_add_f32", ps, T[0], T[1 % nt]))
            elif k > 1:
                out.append(valu("v_add_f32", ps, ps, T[k % nt]))
            if k >= 1 and k % 2 == 1:
                out.append(valu("v_cvt_pk_bf16_f32", Pr[k // 2], T[(k - 1) % nt], T[k % nt]))
        return out

    def softmax9(S9, T, ps2):
        out = []
        for e in range(8):
            out.append(valu("v_fma_f32", T[e], S9[e], sC, Neg(M9[e // 4])))
            if e >= 1:
                out.append(trans("v_exp_f32", T[e - 1], T[e - 1]))
        out.append(valu("v_add_f32", ps2[0], T[0], T[1]))
        out.append(trans("v_exp_f32", T[7], T[7]))
        out.append(valu("v_cvt_pk_bf16_f32", P9[0], T[0], T[1]))
        out.append(valu("v_add_f32", ps2[1], T[4], T[5]))
        out.append(valu("v_cvt_pk_bf16_f32", P9[2], T[4], T[5]))
        out.append(valu("v_add_f32", ps2[0], ps2[0], T[2]))
        out.append(valu("v_cvt_pk_bf16_f32", P9[1], T[2], T[3]))
        out.append(valu("v_add_f32", ps2[1], ps2[1], T[6]))
        out.append(valu("v_cvt_pk_bf16_f32", P9[3], T[6], T[7]))
        out.append(valu("v_add_f32", ps2[0], ps2[0], T[3]))
        out.append(valu("v_add_f32", ps2[1], ps2[1], T[7]))
        out.append(swap16(P9[0], P9[2]))
        out.append(swap16(P9[1], P9[3]))
        return out

    def rowmax16(Sr, T):
        out = [valu("v_max3_f32", T[0], Sr[0], Sr[1], Sr[2]), valu("v_max3_f32", T[1], Sr[3], Sr[4], Sr[5])]
        out += [valu("v_max3_f32", T[0], T[0], Sr[6], Sr[7]), valu("v_max3_f32", T[1], T[1], Sr[8], Sr[9])]
        out += [valu("v_max3_f32", T[0], T[0], Sr[10], Sr[11]), valu("v_max3_f32", T[1], T[1], Sr[12], Sr[13])]
        out += [valu("v_max3_f32", T[0], T[0], Sr[14], Sr[15]), valu("v_max_f32", T[0], T[0], T[1])]
        out += [valu("v_mov_b32", T[1], T[0]), swap32(T[0], T[1]), valu("v_max_f32", T[0], T[0], T[1])]
        return out

    def allrows(op, x, t):
        return [valu("v_mov_b32", t, x), swap16(x, t), valu(op, x, x, t),
                valu("v_mov_b32", t, x), swap32(x, t), valu(op, x, x, t)]

    def rowmax9(S9, T):
        out = []
        for hq in range(2):
            out += [valu("v_max3_f32", T[hq], S9[4 * hq], S9[4 * hq + 1], S9[4 * hq + 2]),
                    valu("v_max_f32", T[hq], T[hq], S9[4 * hq + 3])]
            out += allrows("v_max_f32", T[hq], T[2])
        return out

    def scale_regs(regs, f, tmp):
        out = []
        for g in regs:
            for i in range(16):
                r = g[i]
                if r.f == "v":
                    out.append(valu("v_mul_f32", r, f, r))
                else:
                    t = tmp[i % len(tmp)]
                    out.append(valu("v_accvgpr_read_b32", t, r))
                    out.append(valu("v_mul_f32", t, f, t))
                    out.append(valu("v_accvgpr_write_b32", r, t))
        return out

    def check(ps, slow):
        return [valu("v_cmp_lt_f32", "vcc", sTHR, ps), branch("s_cbranch_vccnz", slow, ["vcc"])]

    def stamp(drain=True):
        if not cfg.stamps:
            return []
        o = [raw(f"s_memtime {sST}", "smem", [], sST.names()), wait(lgkm=0),
             raw(f"v_writelane_b32 {X1}, {sST[0]}, {sSI}", "valu", sST[0].names() + sSI.names() + X1.names(),
                 X1.names()),
             salu("s_add_u32", sSI, sSI, 1)]
        return o

    def kfrag(ks, buf):
        return dsr128(buf, vK[ks % 4], (ks // 4) * 1024)

    def vfrag(p, buf):
        db, s = p // 2, p % 2
        a = vV[(db % 2, s)]
        return [dsrtr(buf[0:2], a, (db // 2) * 1024), dsrtr(buf[2:4], a, 3072 + (db // 2) * 1024)]

    def qk9_reads(i):
        return [dsr128(F[4], vK16[i % 2], (i // 2) * 1024),
                dsr128(F[5], vQ9[i % 2], (i // 2) * 1024),
                dsr128(F[6], vQ9[i % 2], 6144 + (i // 2) * 1024)]

    def qk9_mfmas(i, S9):
        return [mfma16(S9[0:4], F[4], F[5], 0 if i == 0 else S9[0:4]),
                mfma16(S9[4:8], F[4], F[6], 0 if i == 0 else S9[4:8])]

    ENTRY_PEND = [set(F[0].names()), set(F[1].names()), set(F[2].names())]

    pro = []
    a = pro.append
    T = [V(144 + i) for i in range(48)]
    vL, vH = T[0], T[1]
    a(scmp("s_cmp_ge_u32", S(2), 256))
    a(branch("s_cbranch_scc1", "L_end", ["scc"]))
    a(raw("s_load_dwordx4 s[4:7], s[0:1], 0", "smem", [], ["s4", "s5", "s6", "s7"]))
    a(raw("s_load_dwordx4 s[8:11], s[0:1], 16", "smem", [], ["s8", "s9", "s10", "s11"]))
    if cfg.stamps:
        a(raw("s_load_dwordx2 s[28:29], s[0:1], 40", "smem", [], ["s28", "s29"]))
        a(smov(sSI, 0))
        a(valu("v_mov_b32", X1, 0))
    a(valu("v_lshrrev_b32", T[2], 6, V(0)))
    a(valu("v_and_b32", vL, 63, V(0)))
    a(valu("v_readfirstlane_b32", sW, T[2]))
    a(salu("s_mul_i32", sT0, S(2), 110592, scc=False))
    a(salu("s_mul_i32", sT1, S(2), 196608, scc=False))
    r8, j8, rh, E, r384 = T[3], T[4], T[5], T[6], T[7]
    a(valu("v_lshrrev_b32", r8, 3, vL))
    a(valu("v_and_b32", j8, 7, vL))
    a(valu("v_lshrrev_b32", rh, 4, vL))
    a(valu("v_mul_u32_u24", r384, 384, r8))
    a(valu("v_xor_b32", E, j8, rh))
    a(valu("v_lshl_add_u32", E, E, 4, r384))
    a(salu("s_mul_i32", sW3072, sW, 3072, scc=False))
    a(salu("s_and_b32", sWodd, sW, 1))
    a(salu("s_lshl_b32", sT2, sWodd, 6))
    a(salu("s_mul_i32", sT3, sW, 24576, scc=False))
    a(valu("v_xor_b32", voffK, sT2, E))
    a(valu("v_add_u32", voffK, sW3072, voffK))
    vQe, vQo = T[8], T[9]
    a(valu("v_add_u32", vQe, sT3, E))
    a(valu("v_xor_b32", vQo, 64, vQe))
    a(valu("v_and_b32", T[10], 1, rh))
    a(valu("v_lshlrev_b32", T[10], 2, T[10]))
    a(valu("v_xor_b32", T[10], T[10], j8))
    a(valu("v_lshl_add_u32", voffV, T[10], 4, r384))
    a(valu("v_add_u32", voffV, sW3072, voffV))
    a(wait(lgkm=0))
    for srd, lo, off, sz in ((srdK, 6, sT1, 196608), (srdQ, 4, sT0, 110592), (srdV, 8, sT1, 196608),
                             (srdO, 10, sT0, 110592)):
        a(salu("s_add_u32", srd[0], S(lo), off))
        a(salu("s_addc_u32", srd[1], S(lo + 1), 0, rd_scc=True))
        a(smov(srd[2], sz))
        a(smov(srd[3], 0x20000))
    if cfg.stamps:
        a(smov(srdW[2], 0x10000000))
        a(smov(srdW[3], 0x20000))
    pro += stamp()

    def issue(pairs):
        for m, d in pairs:
            a(m)
            a(d)

    def ldK(u):
        a(smov(sG, u * SLOT))
        issue(dma3(voffK, srdK, sG, sW3072, (u % 6) * SLOT))

    def ldV(u):
        a(smov(sG, u * SLOT))
        issue(dma3(voffV, srdV, sG, sW3072, VRING + ((u + 1) % 6) * SLOT))

    ldK(0)
    QSL = [8, 3]
    for t in range(2):
        for i in range(4):
            a(smov(sG, (4 * t + i) * 3072))
            issue(dma3(vQo if i & 1 else vQe, srdQ, sG, sW3072, (QSL[t] + i) * SLOT))
    a(smov(sG, 256 * 384))
    issue(dma3(voffK, srdQ, sG, sW3072, Q9BASE))
    ldK(1)
    ldV(0)
    ldK(2)
    a(smov(sC, f32bits(192 ** -0.5 * math.log2(math.e))))
    a(smov(sTHR, f32bits(cfg.thr)))
    a(smov(sPOS, SLOT))
    a(smov(sD, SLOT))
    a(smov(sU, 0))
    a(smov(sDMA, sW3072))
    a(smov(sBIT4[0], 0xFFFF0000))
    a(smov(sBIT4[1], 0xFFFF0000))
    a(valu("v_lshrrev_b32", vH, 5, vL))
    m, mp, t1, t2 = T[10], T[11], T[12], T[13]
    a(valu("v_and_b32", m, 31, vL))
    a(salu("s_lshl_b32", sT2, sWodd, 4))
    a(valu("v_xor_b32", mp, sT2, m))

    def rowaddr(dst, row, sel, gstride, tmp1, tmp2):
        a(valu("v_lshrrev_b32", tmp1, 3, row))
        a(valu("v_mul_u32_u24", tmp1, gstride, tmp1))
        a(valu("v_and_b32", tmp2, 7, row))
        a(valu("v_lshl_add_u32", tmp1, tmp2, 7, tmp1))
        a(valu("v_bfe_u32", tmp2, row, 1, 3))
        a(valu("v_xor_b32", tmp2, tmp2, sel))
        a(valu("v_lshl_add_u32", dst, tmp2, 4, tmp1))

    rowaddr(vK[0], mp, vH, 3072, t1, t2)
    for i in range(1, 4):
        a(valu("v_xor_b32", vK[i], i << 5, vK[0]))
    vQs = [T[14 + i] for i in range(4)]
    rowaddr(vQs[0], m, vH, SLOT, t1, t2)
    a(salu("s_add_u32", sT3, sW3072, 3 * SLOT))
    a(valu("v_add_u32", vQs[0], sT3, vQs[0]))
    for i in range(1, 4):
        a(valu("v_xor_b32", vQs[i], i << 5, vQs[0]))
    r, cc, dh = T[18], T[19], T[20]
    a(valu("v_bfe_u32", r, vL, 2, 2))
    a(valu("v_lshl_add_u32", t1, vH, 2, r))
    a(valu("v_lshlrev_b32", t1, 7, t1))
    a(valu("v_lshrrev_b32", t2, 1, r))
    a(valu("v_lshl_add_u32", t1, t2, 6, t1))
    a(valu("v_bfe_u32", dh, vL, 4, 1))
    a(valu("v_lshl_add_u32", t1, dh, 5, t1))
    a(valu("v_and_b32", cc, 3, vL))
    a(valu("v_lshl_add_u32", t1, cc, 3, t1))
    a(salu("s_mul_i32", sT2, sWodd, 6144, scc=False))
    a(salu("s_add_u32", sT3, sT2, VRING + SLOT))
    a(salu("s_sub_u32", sT2, VRING + SLOT + 6144, sT2))
    a(valu("v_add_u32", vV[(0, 0)], sT3, t1))
    a(valu("v_add_u32", vV[(0, 1)], sT2, t1))
    a(valu("v_xor_b32", vV[(1, 0)], 64, vV[(0, 0)]))
    a(valu("v_xor_b32", vV[(1, 1)], 64, vV[(0, 1)]))
    r16, cg, key = T[18], T[19], T[20]
    a(valu("v_and_b32", r16, 15, vL))
    a(valu("v_lshrrev_b32", cg, 4, vL))
    a(valu("v_and_b32", key, 3, r16))
    a(valu("v_bfe_u32", t1, r16, 3, 1))
    a(valu("v_lshl_add_u32", key, t1, 2, key))
    a(valu("v_bfe_u32", t1, r16, 2, 1))
    a(valu("v_lshl_add_u32", key, t1, 3, key))
    a(salu("s_lshl_b32", sT2, sWodd, 4))
    a(valu("v_add_u32", key, sT2, key))
    rowaddr(vK16[0], key, cg, 3072, t1, t2)
    a(valu("v_xor_b32", vK16[1], 64, vK16[0]))
    rowaddr(vQ9[0], r16, cg, 3072, t1, t2)
    a(valu("v_add_u32", vQ9[0], Q9BASE, vQ9[0]))
    a(valu("v_xor_b32", vQ9[1], 64, vQ9[0]))
    for i in range(4):
        a(valu("v_mov_b32", F[4][i], 0))
    for rr in (L0, L1, L9[0], L9[1]):
        a(valu("v_mov_b32", rr, 0))
    for g in O0 + O1 + O9:
        a(mfma32(g, F[4], F[4], 0))
    a(wait(vm=24))
    for ks in range(12):
        a(dsr128(Q[0][ks], vQs[ks % 4], 5 * SLOT + (ks // 4) * 1024))
    a(wait(vm=12))
    for ks in range(12):
        a(dsr128(Q[1][ks], vQs[ks % 4], (ks // 4) * 1024))
    a(wait(lgkm=12))
    ldV(1)
    a(wait(lgkm=0))
    ldK(3)
    ldV(2)
    ldK(4)
    ldV(3)
    ldK(5)
    ldV(4)
    a(valu("v_add_u32", voffK, SLOT, voffK))
    a(smov(sG, 5 * SLOT))
    a(wait(vm=30))
    a(barrier())
    pro += stamp()
    S9p = P0["b"]
    mf = []
    for ks in range(12):
        mf.append(mfma32(S0, F[ks % 4], Q[0][ks], 0 if ks == 0 else S0))
        mf.append(mfma32(S1["b"], F[ks % 4], Q[1][ks], 0 if ks == 0 else S1["b"]))
        if ks % 2 == 1:
            mf += qk9_mfmas(ks // 2, S9p)
    ph = Phase(mf)
    ph.put(0, kfrag(0, F[0]), kfrag(1, F[1]), *qk9_reads(0))
    ph.put(0, kfrag(2, F[2]), kfrag(3, F[3]))
    idx = 0
    for ks in range(12):
        idx += 2
        if ks + 4 < 12:
            ph.put(idx, kfrag(ks + 4, F[ks % 4]))
        if ks % 2 == 1:
            idx += 2
            if ks // 2 + 1 < 6:
                ph.put(idx, *qk9_reads(ks // 2 + 1))
    pro += ph.emit()
    a(wait(vm=24, lgkm=0))
    a(barrier())
    for i in range(4):
        a(valu("v_add_u32", vK[i], sPOS, vK[i]))
    for i in range(2):
        a(valu("v_add_u32", vK16[i], sPOS, vK16[i]))
    for i in range(3):
        a(kfrag(i, F[i]))
    TT = [S1["a"][i] for i in range(16)]
    pro += rowmax16(S0, TT)
    a(valu("v_mul_f32", M0r, sC, TT[0]))
    pro += rowmax16(S1["b"], TT)
    a(valu("v_mul_f32", M1r, sC, TT[0]))
    pro += rowmax9(S9p, TT)
    a(valu("v_mul_f32", M9[0], sC, TT[0]))
    a(valu("v_mul_f32", M9[1], sC, TT[1]))
    pro += softmax16(S0, P0["a"], M0r, TT[0:4], L0)
    a(scmp("s_cmp_ge_u32", sW, 2))
    a(branch("s_cbranch_scc1", "L_enterB", ["scc"]))
    pro_common, pend = finalize(pro, log=logs)
    assert pend[-3:] == ENTRY_PEND, pend
    proA = softmax9(S9p, TT[0:8], L9)
    proA, _ = finalize(proA, hist=pro_common[-30:], log=logs)
    proB = [label("L_enterB")]
    for i in range(16):
        proB.append(valu("v_mov_b32", S1["a"][i], S1["b"][i]))
    for i in range(8):
        proB.append(valu("v_mov_b32", P0["b"][i], P0["a"][i]))
    proB.append(branch("s_branch", "L_B"))
    proB, _ = finalize(proB, hist=pro_common[-30:], log=logs)

    slow_blocks = []

    def slow_main(name, ret, Sr, Pr, Mr, Lr, Og, T, ps):
        o = [label(name), nop(16)]
        o += rowmax16(Sr, T)
        o.append(valu("v_mul_f32", T[0], sC, T[0]))
        o.append(valu("v_max_f32", T[0], T[0], Mr))
        o.append(valu("v_sub_f32", T[1], Mr, T[0]))
        o.append(trans("v_exp_f32", T[1], T[1]))
        o.append(valu("v_mov_b32", Mr, T[0]))
        o.append(valu("v_mul_f32", Lr, T[1], Lr))
        o += scale_regs(Og, T[1], [T[2], T[3]])
        o += softmax16(Sr, Pr, Mr, T[0:4], ps)
        o.append(nop(4))
        o.append(branch("s_branch", ret))
        o, _ = finalize(o, log=None)
        slow_blocks.append((name, o))

    def slow_9(name, ret, S9, T, ps2):
        o = [label(name), nop(16)]
        o += rowmax9(S9, T)
        for hq in range(2):
            o.append(valu("v_mul_f32", T[hq], sC, T[hq]))
            o.append(valu("v_max_f32", T[hq], T[hq], M9[hq]))
            o.append(valu("v_sub_f32", T[2 + hq], M9[hq], T[hq]))
            o.append(trans("v_exp_f32", T[2 + hq], T[2 + hq]))
            o.append(valu("v_mov_b32", M9[hq], T[hq]))
            o.append(valu("v_mul_f32", L9[hq], T[2 + hq], L9[hq]))
        o.append(valu("v_cndmask_b32", T[4], T[2], T[3], sBIT4))
        o += scale_regs(O9, T[4], [T[5], T[6]])
        o += softmax9(S9, T[0:8], ps2)
        o.append(valu("v_max_f32", T[10], ps2[0], ps2[1]))
        o.append(nop(4))
        o.append(branch("s_branch", ret))
        o, _ = finalize(o, log=None)
        slow_blocks.append((name, o))

    def block(X):
        isA = X == "A"
        Sw, Sr = (S1["a"], S1["b"]) if isA else (S1["b"], S1["a"])
        Pr, Pw = (P0["a"], P0["b"]) if isA else (P0["b"], P0["a"])
        S9 = Pw
        mf = []
        pos = {}
        smallafter = {3: 0, 6: 1, 10: 2, 13: 3, 16: 4, 19: 5}
        nb = 0
        for ks in range(12):
            for t in range(2):
                D = S0 if t == 0 else Sw
                pos[(ks, t)] = len(mf)
                mf.append(mfma32(D, F[ks % 4], Q[t][ks], 0 if ks == 0 else D))
                if not isA and nb in smallafter:
                    i = smallafter[nb]
                    pos[("s", i)] = len(mf)
                    mf += qk9_mfmas(i, S9)
                nb += 1
        ph = Phase(mf)
        n = len(mf)
        for ks in range(12):
            ph.res[pos[(ks, 0)]] += 2
        ph.put(0, kfrag(3, F[3]))
        for ks in range(4, 12):
            ph.put(pos[(ks - 4, 1)] + 1, kfrag(ks, F[ks % 4]))
        if not isA:
            ph.put(0, *qk9_reads(0))
            for i in range(1, 6):
                g = pos[("s", i - 1)] + 2
                rds = qk9_reads(i)
                ph.put(g, rds[0])
                ph.put(g + 1, rds[1], rds[2])
            for i in range(6):
                ph.res[pos[("s", i)]] += 4
        g0 = pos[(10, 0)] + (1 if not isA else 0)
        for p in range(3):
            ph.put(min(g0 + p, n), *vfrag(p, F[4 + p]))
        dm = dma3(voffK, srdK, sG, sDMA, 0) + dma3(voffV, srdV, sG, sDMA, VRING)
        dgaps = [pos[(1, 0)], pos[(2, 1)], pos[(4, 0)], pos[(5, 1)], pos[(7, 0)], pos[(8, 1)]]
        for (m_, d_), g in zip(dm, dgaps):
            ph.gaps[g].insert(0, m_)
            ph.put(g, d_)
        g = pos[(9, 1)]
        ph.put(g, salu("s_add_u32", sDMA, sDMA, sD), salu("s_add_u32", sG, sG, SLOT))
        g = pos[(10, 0)]
        ph.put(g, scmp("s_cmp_ge_u32", sU, 10), salu("s_cselect_b32", sDMA, LDS_BYTES, sDMA, scc=False, rd_scc=True))
        g = pos[(10, 1)]
        ph.put(g, scmp("s_bitcmp1_b32", 0x10410, sU),
               salu("s_cselect_b32", sD, (-5 * SLOT) & 0xFFFFFFFF, sPOS, scc=False, rd_scc=True))
        Tq = [Pw[i] for i in range(4)] if isA else [P9[i] for i in range(4)]
        ph.spread(softmax16(Sr, P1, M1r, Tq, X0), 0, n - 1)
        ph.put(n, *check(X0, f"L_slow1{X}"))
        ph.put(n, label(f"L_ret1{X}"), valu("v_add_f32", L1, L1, X0))
        slow_main(f"L_slow1{X}", f"L_ret1{X}", Sr, P1, M1r, L1, O1, Tq, X0)
        qk = ph.emit()
        mf = []
        pos = {}
        vb = lambda p: F[3 + ((p + 1) % 4)]
        for p in range(12):
            db, s = p // 2, p % 2
            pos[p] = len(mf)
            mf.append(mfma32(O0[db], vb(p), Pr[4 * s:4 * s + 4], O0[db]))
            mf.append(mfma32(O1[db], vb(p), P1[4 * s:4 * s + 4], O1[db]))
            if isA and s == 0:
                mf.append(mfma32(O9[db], vb(p), P9, O9[db]))
            pos[(p, "end")] = len(mf)
        ph = Phase(mf)
        n = len(mf)
        for p in range(12):
            ph.res[pos[p]] += 2
        ph.put(0, *vfrag(3, vb(3)))
        for p in range(4, 12):
            ph.put(pos[(p - 4, "end")], *vfrag(p, vb(p)))
        adv = [valu("v_add_u32", x, sD, x) for x in vK + vK16]
        ph.put(1, *adv[0:3])
        ph.put(2, *adv[3:6])
        gb = pos[9]
        ph.put(gb, *stamp())
        ph.put(gb, wait(vm=24, lgkm=0), barrier())
        ph.put(gb, *stamp())
        ph.put(gb + 1, kfrag(0, F[0]), kfrag(1, F[1]))
        ph.put(gb + 2, kfrag(2, F[2]))
        advv = [valu("v_add_u32", x, sD, x) for x in vV.values()]
        ph.put(gb + 2, *advv[0:2])
        ph.put(gb + 3, *advv[2:4])
        ph.put(gb + 3, salu("s_add_u32", sU, sU, 1))
        Tp = [Sr[i] for i in range(16)]
        if isA:
            ph.spread(softmax16(S0, Pw, M0r, Tp[0:4], X0), 2, n - 1)
        else:
            ps2 = [Tp[8], Tp[9]]
            s9 = softmax9(S9, Tp[0:8], ps2)
            s9.append(valu("v_max_f32", Tp[10], ps2[0], ps2[1]))
            s9 += check(Tp[10], "L_slow9")
            s9 += [label("L_ret9"), valu("v_add_f32", L9[0], L9[0], ps2[0]), valu("v_add_f32", L9[1], L9[1], ps2[1])]
            slow_9("L_slow9", "L_ret9", S9, Tp, ps2)
            ph.spread(s9 + softmax16(S0, Pw, M0r, Tp[12:16], X0), 0, n - 1)
        ph.put(n, *check(X0, f"L_slow0{X}"))
        ph.put(n, label(f"L_ret0{X}"), valu("v_add_f32", L0, L0, X0))
        slow_main(f"L_slow0{X}", f"L_ret0{X}", S0, Pw, M0r, L0, O0, Tp[0:4], X0)
        ph.put(n, scmp("s_cmp_eq_u32", sU, 15))
        ph.put(n, branch("s_cbranch_scc1", "L_tailB" if isA else "L_tailA", ["scc"]))
        if not isA:
            ph.put(n, branch("s_branch", "L_A"))
        pv = ph.emit()
        seq = [label(f"L_{X}")] + qk + pv
        out, pend = finalize(seq, pend=ENTRY_PEND, log=logs)
        assert pend[-3:] == ENTRY_PEND, pend
        return out

    blkA = block("A")
    blkB = block("B")

    VF = [A(4 * p, 4) for p in range(12)]

    def tail(X):
        isA = X == "A"
        Sr = S1["b"] if isA else S1["a"]
        Pr, Pw = (P0["a"], P0["b"]) if isA else (P0["b"], P0["a"])
        mf = []
        for p in range(12):
            db, s = p // 2, p % 2
            mf.append(mfma32(O0[db], VF[p], Pr[4 * s:4 * s + 4], O0[db]))
            if isA and s == 0:
                mf.append(mfma32(O9[db], VF[p], P9, O9[db]))
        ph = Phase(mf)
        n = len(mf)
        for p in range(5):
            ph.put(0, *vfrag(p, VF[p]))
        for p in range(5, 12):
            ph.put(p - 4, *vfrag(p, VF[p]))
        Tq = [Pw[i] for i in range(4)]
        sm = softmax16(Sr, P1, M1r, Tq, X0)
        ph.put(0, *sm[:12])
        ph.spread(sm[12:], 1, n - 1)
        ph.put(n, *check(X0, f"L_slowT{X}"))
        ph.put(n, label(f"L_retT{X}"), valu("v_add_f32", L1, L1, X0))
        slow_main(f"L_slowT{X}", f"L_retT{X}", Sr, P1, M1r, L1, O1, Tq, X0)
        if not isA:
            ph.put(n, branch("s_branch", "L_fin"))
        seq = [label(f"L_tail{X}")] + ph.emit()
        out, pend = finalize(seq, pend=ENTRY_PEND, log=logs)
        assert not pend, pend
        return out

    tailB = tail("B")
    tailA = tail("A")

    fin = [label("L_fin")]
    a = fin.append
    E_ = [V(144 + i) for i in range(64)]
    lane, q32, hh, inv0, inv1 = E_[0], E_[1], E_[2], E_[3], E_[4]
    wa = [E_[8 + i] for i in range(8)]
    ra = [E_[16 + i] for i in range(3)]
    so = E_[19]
    xa, xr, ma = E_[20], E_[21], E_[22]
    t1, t2, t3 = E_[5], E_[6], E_[7]
    pre = []
    b = pre.append
    b(valu("v_mbcnt_lo_u32_b32", lane, -1, 0))
    b(valu("v_mbcnt_hi_u32_b32", lane, -1, lane))
    b(valu("v_mov_b32", t1, L0))
    b(valu("v_and_b32", q32, 31, lane))
    b(swap32(L0, t1))
    b(valu("v_add_f32", t1, L0, t1))
    b(trans("v_rcp_f32", inv0, t1))
    b(valu("v_lshrrev_b32", hh, 5, lane))
    b(salu("s_lshr_b32", sT0, sW, 1))
    b(salu("s_add_u32", sT0, sT0, sW))
    b(salu("s_mul_i32", sT0, sT0, SLOT, scc=False))
    b(salu("s_add_u32", sT0, sT0, 8 * SLOT))
    b(valu("v_mul_u32_u24", t2, 384, q32))
    b(valu("v_lshl_add_u32", t2, hh, 3, t2))
    b(valu("v_and_b32", t3, 7, q32))
    b(valu("v_lshl_add_u32", t2, t3, 4, t2))
    b(valu("v_add_u32", wa[0], sT0, t2))
    for i in range(1, 8):
        b(valu("v_xor_b32", wa[i], i << 4, wa[0]))

    def epi_block(Og, inv, db, tmp):
        o = []
        g = Og[db]
        src = g
        if g.f == "a":
            src = tmp
            for i in range(16):
                o.append(valu("v_accvgpr_read_b32", tmp[i], g[i]))
        for i in range(16):
            o.append(valu("v_mul_f32", src[i], inv, src[i]))
        for i in range(4):
            o.append(valu("v_cvt_pk_bf16_f32", src[4 * i], src[4 * i], src[4 * i + 1]))
            o.append(valu("v_cvt_pk_bf16_f32", src[4 * i + 1], src[4 * i + 2], src[4 * i + 3]))
            c = 4 * db + i
            o.append(dsw64(wa[c % 8], src[4 * i:4 * i + 2], (c // 8) * 128))
        return o

    mf = []
    for p in range(12):
        db, s = p // 2, p % 2
        mf.append(mfma32(O1[db], VF[p], P1[4 * s:4 * s + 4], O1[db]))
    ph = Phase(mf)
    st = list(pre)
    for db in range(6):
        st += epi_block(O0, inv0, db, None)
    k = 0
    for g in range(1, 13):
        ph.put(g, *st[k:k + 6])
        k += 6
    fin += ph.emit()
    fin += st[k:]
    for i in range(3):
        a(valu("v_add_u32", t1, 64 * i, lane))
        a(valu("v_mul_u32_u24", t2, 2731, t1))
        a(valu("v_bfe_u32", t2, t2, 16, 3))
        a(valu("v_xor_b32", t1, t1, t2))
        a(valu("v_lshlrev_b32", t1, 4, t1))
        a(valu("v_add_u32", ra[i], sT0, t1))
    a(salu("s_mul_i32", sT1, sW, 24576, scc=False))
    a(valu("v_lshlrev_b32", so, 4, lane))
    a(valu("v_add_u32", xa, sT1, so))
    a(salu("s_mul_i32", sT2, sW, 6144, scc=False))
    a(valu("v_add_u32", xr, sT2, so))

    def readback_store(dst, t):
        o = []
        for i in range(12):
            o.append(dsr128(dst[i], ra[i % 3], (i // 3) * 3072))
        for i in range(12):
            off = t * SLOT + i * 1024
            o.append(smov(sT3, off & ~4095))
            o.append(vstore(dst[i], xa, srdO, sT3, off & 4095, cfg.st))
        return o

    D0 = [V(4 * i, 4) for i in range(12)]
    fin += readback_store(D0, 0)
    for k in range(24):
        a(dsw128(xa, A(96 + 4 * k, 4), k * 1024))
    for hq in range(2):
        fin += allrows("v_add_f32", L9[hq], t1)
    ml = V(E_[24].i, 2)
    a(valu("v_cndmask_b32", ml[0], M9[0], M9[1], sBIT4))
    a(valu("v_cndmask_b32", ml[1], L9[0], L9[1], sBIT4))
    a(valu("v_lshlrev_b32", ma, 3, q32))
    a(valu("v_add_u32", ma, MLBASE, ma))
    a(salu("s_lshl_b32", sT2, sW, 8))
    a(valu("v_add_u32", t1, sT2, ma))
    a(dsw64(t1, ml))
    a(valu("v_mov_b32", t1, L1))
    a(nop(2))
    a(swap32(L1, t1))
    a(valu("v_add_f32", t1, L1, t1))
    a(trans("v_rcp_f32", inv1, t1))
    tmp16 = V(48, 16)
    for db in range(6):
        fin += epi_block(O1, inv1, db, V(48 + 16 * (db % 3), 16))
    D1 = [V(96 + 4 * i, 4) for i in range(12)]
    fin += readback_store(D1, 1)
    a(wait(lgkm=0))
    a(barrier())
    MLs = [V(E_[26].i + 2 * s_, 2) for s_ in range(4)]
    for s_ in range(4):
        a(dsr64(MLs[s_], ma, s_ * 256))
    XS = [[A(4 * (6 * s_ + k), 4) for k in range(6)] for s_ in range(4)]
    XS = [[V(48 + 0, 4)] * 6] * 4
    XS = [[None] * 6 for _ in range(4)]
    pool = [V(48 + 4 * i, 4) for i in range(12)] + [V(180 + 4 * i, 4) for i in range(12)]
    for s_ in range(4):
        for k in range(6):
            XS[s_][k] = pool[s_ * 6 + k]
    for s_ in range(4):
        for k in range(6):
            off = s_ * 24576 + k * 1024
            if off <= 65535:
                a(dsr128(XS[s_][k], xr, off))
            else:
                if k == 0:
                    a(valu("v_add_u32", xr, 49152, xr))
                a(dsr128(XS[s_][k], xr, off - 49152))
    mx, lt = t1, t2
    a(valu("v_max3_f32", mx, MLs[0][0], MLs[1][0], MLs[2][0]))
    a(valu("v_max_f32", mx, mx, MLs[3][0]))
    for s_ in range(4):
        a(valu("v_sub_f32", MLs[s_][0], MLs[s_][0], mx))
    for s_ in range(4):
        a(trans("v_exp_f32", MLs[s_][0], MLs[s_][0]))
    a(valu("v_mul_f32", lt, MLs[0][0], MLs[0][1]))
    for s_ in range(1, 4):
        a(valu("v_fma_f32", lt, MLs[s_][0], MLs[s_][1], lt))
    a(trans("v_rcp_f32", lt, lt))
    for s_ in range(4):
        a(valu("v_mul_f32", MLs[s_][0], MLs[s_][0], lt))
    for k in range(6):
        for j in range(4):
            a(valu("v_mul_f32", XS[0][k][j], MLs[0][0], XS[0][k][j]))
    for s_ in range(1, 4):
        for k in range(6):
            for j in range(4):
                a(valu("v_fma_f32", XS[0][k][j], MLs[s_][0], XS[s_][k][j], XS[0][k][j]))
    a(valu("v_mul_u32_u24", t3, 384, q32))
    a(valu("v_lshl_add_u32", t3, hh, 4, t3))
    a(salu("s_mul_i32", sT2, sW, 96, scc=False))
    a(salu("s_add_u32", sT2, sT2, 256 * 384))
    for kp in range(3):
        dq = XS[1][kp]
        g0, g1 = XS[0][2 * kp], XS[0][2 * kp + 1]
        a(valu("v_cvt_pk_bf16_f32", dq[0], g0[0], g0[1]))
        a(valu("v_cvt_pk_bf16_f32", dq[1], g0[2], g0[3]))
        a(valu("v_cvt_pk_bf16_f32", dq[2], g1[0], g1[1]))
        a(valu("v_cvt_pk_bf16_f32", dq[3], g1[2], g1[3]))
        a(swap32(dq[0], dq[2]))
        a(swap32(dq[1], dq[3]))
        a(vstore(dq, t3, srdO, sT2, kp * 32, ""))
    if cfg.stamps:
        fin += stamp()
        a(wait(vm=0))
        fin += stamp()
        a(raw(f"s_memrealtime {sST}", "smem", [], sST.names()))
        a(wait(lgkm=0))
        a(raw(f"v_writelane_b32 {X1}, {sST[0]}, 63", "valu", sST[0].names() + X1.names(), X1.names()))
        a(salu("s_lshl_b32", sT2, S(2), 2))
        a(salu("s_add_u32", sT2, sT2, sW))
        a(salu("s_lshl_b32", sT2, sT2, 8))
        a(valu("v_lshlrev_b32", t1, 2, lane))
        a(vstore(X1, t1, srdW, sT2, 0, "", op="buffer_store_dword"))
    a(label("L_end"))
    a(raw("s_endpgm", "br"))
    fin, _ = finalize(fin, hist=tailA[-30:], log=logs)

    bad = 0
    bad += check_path("pro-A-B", pro_common, proA, blkA, blkB, blkA)
    bad += check_path("pro-B-A", pro_common, proB, blkB, blkA, blkB)
    bad += check_path("A-tailB-fin", blkA, tailB, fin)
    bad += check_path("B-tailA-fin", blkB, tailA, fin)
    assert bad == 0
    info = dict(A=est_cycles(blkA), B=est_cycles(blkB), nA=len(blkA), nB=len(blkB), pro=est_cycles(pro_common),
                tailA=est_cycles(tailA), tailB=est_cycles(tailB), fin=est_cycles(fin))

    body = pro_common + proA + blkA + blkB + proB + tailB + tailA + fin
    for _, o in slow_blocks:
        body += o
    hdr = f"""; Flash-style attention forward, one workgroup (4 waves, one per SIMD, 512 registers) per (batch, head).
; Softmax: running reference max per row (true max of the keys seen when it was last set); every 32-key unit is
; checked and falls back to a rescale with the true running max when the partial sum leaves the safe range.
; @launch grid=(256,1,1) block=(256,1,1) lds={LDS_BYTES}
.amdgcn_target "amdgcn-amd-amdhsa--gfx950"
.text
.globl {KN}
.p2align 8
.type {KN},@function
{KN}:
"""
    ftr = f"""
.section .rodata,"a"
.p2align 6
.amdhsa_kernel {KN}
  .amdhsa_next_free_vgpr 512
  .amdhsa_next_free_sgpr 64
  .amdhsa_accum_offset 256
  .amdhsa_group_segment_fixed_size 0
  .amdhsa_kernarg_size 48
  .amdhsa_user_sgpr_count 2
  .amdhsa_user_sgpr_kernarg_segment_ptr 1
  .amdhsa_system_sgpr_workgroup_id_x 1
  .amdhsa_float_denorm_mode_32 3
.end_amdhsa_kernel
"""
    txt = hdr + "\n".join(("" if i.kind == "label" else "    ") + i.txt for i in body) + ftr
    return txt, info, logs


if __name__ == "__main__":
    out = sys.argv[1]
    cfg = Cfg()
    for kv in sys.argv[2:]:
        k, v = kv.split("=")
        cur = getattr(cfg, k)
        if isinstance(cur, bool):
            v = v in ("1", "true", "True")
        elif isinstance(cur, (int, float)):
            v = type(cur)(float(v))
        setattr(cfg, k, v)
    txt, info, logs = gen(cfg)
    open(out, "w").write(txt)
    print(info)
    for l in logs:
        print("  ", l)
```

```python
class Reg:
    def __init__(self, f, i, n=1):
        self.f, self.i, self.n = f, i, n

    def __str__(self):
        return f"{self.f}{self.i}" if self.n == 1 else f"{self.f}[{self.i}:{self.i + self.n - 1}]"

    def names(self):
        return [f"{self.f}{self.i + k}" for k in range(self.n)]

    def __getitem__(self, k):
        if isinstance(k, slice):
            a = k.start or 0
            b = k.stop if k.stop is not None else self.n
            assert 0 <= a < b <= self.n, (a, b, self.n)
            return Reg(self.f, self.i + a, b - a)
        assert 0 <= k < self.n, (k, self.n)
        return Reg(self.f, self.i + k, 1)


def V(i, n=1):
    return Reg("v", i, n)


def A(i, n=1):
    return Reg("a", i, n)


def S(i, n=1):
    return Reg("s", i, n)


def _names(x):
    if isinstance(x, Reg):
        return x.names()
    if isinstance(x, str):
        y = x.lstrip("-")
        if y in ("vcc", "scc", "m0", "exec"):
            return [y]
        return []
    if isinstance(x, Neg):
        return x.r.names()
    return []


class Neg:
    def __init__(self, r):
        self.r = r

    def __str__(self):
        return "-" + str(self.r)


COST = dict(mfma8=8, mfma4=8, valu=4, trans=8, perm=4, dsr=4, dsw=8, dma=16, vst=16, salu=4, wait=4, nop=4,
            bar=4, br=4, label=0, smem=4, comment=0)


class Ins:
    def __init__(self, txt, kind, rd=(), wr=(), cost=None, srcc=None):
        self.txt, self.kind = txt, kind
        self.rd = set(rd)
        self.wr = set(wr)
        self.cost = COST[kind] if cost is None else cost
        self.srcc = srcc
        self.states = 1
        self.lgkm = None
        self.vm = None

    def __repr__(self):
        return self.txt


def fmt(x):
    if isinstance(x, int):
        return str(x) if -16 <= x <= 64 else hex(x & 0xFFFFFFFF)
    return str(x)


def valu(op, dst, *src, kind="valu", extra="", rd_extra=(), wr_extra=()):
    rd = []
    for s in src:
        rd += _names(s)
    txt = f"{op} {fmt(dst)}, " + ", ".join(fmt(s) for s in src) + (" " + extra if extra else "")
    return Ins(txt, kind, rd + list(rd_extra), _names(dst) + list(wr_extra))


def trans(op, dst, src):
    return valu(op, dst, src, kind="trans")


def salu(op, dst, *src, scc=True, rd_scc=False):
    rd = []
    for s in src:
        rd += _names(s)
    if rd_scc:
        rd.append("scc")
    wr = _names(dst) + (["scc"] if scc else [])
    return Ins(f"{op} {fmt(dst)}, " + ", ".join(fmt(s) for s in src), "salu", rd, wr)


def smov(dst, src):
    return salu("s_mov_b32", dst, src, scc=False)


def scmp(op, a, b):
    return Ins(f"{op} {fmt(a)}, {fmt(b)}", "salu", _names(a) + _names(b), ["scc"])


def mfma32(d, a, b, c):
    cn = _names(c)
    return Ins(f"v_mfma_f32_32x32x16_bf16 {d}, {a}, {b}, {fmt(c)}", "mfma8", a.names() + b.names() + cn, d.names(),
               srcc=cn)


def mfma16(d, a, b, c):
    cn = _names(c)
    return Ins(f"v_mfma_f32_16x16x32_bf16 {d}, {a}, {b}, {fmt(c)}", "mfma4", a.names() + b.names() + cn, d.names(),
               srcc=cn)


def _off(o):
    assert 0 <= o <= 65535, o
    return f" offset:{o}" if o else ""


def dsr128(d, addr, off=0):
    return Ins(f"ds_read_b128 {d}, {addr}{_off(off)}", "dsr", addr.names(), d.names())


def dsr64(d, addr, off=0):
    return Ins(f"ds_read_b64 {d}, {addr}{_off(off)}", "dsr", addr.names(), d.names())


def dsrtr(d, addr, off=0):
    return Ins(f"ds_read_b64_tr_b16 {d}, {addr}{_off(off)}", "dsr", addr.names(), d.names())


def dsw128(addr, s, off=0):
    return Ins(f"ds_write_b128 {addr}, {s}{_off(off)}", "dsw", addr.names() + s.names(), [])


def dsw64(addr, s, off=0):
    return Ins(f"ds_write_b64 {addr}, {s}{_off(off)}", "dsw", addr.names() + s.names(), [])


def dma(voff, srd, soff, off=0, flag=""):
    assert 0 <= off <= 4095
    o = f" offset:{off}" if off else ""
    fl = f" {flag}" if flag else ""
    return Ins(f"buffer_load_dwordx4 {voff}, {srd}, {fmt(soff)} offen{o}{fl} lds", "dma",
               voff.names() + srd.names() + _names(soff) + ["m0"], [])


def vstore(data, voff, srd, soff, off=0, flag="", op="buffer_store_dwordx4"):
    assert 0 <= off <= 4095
    o = f" offset:{off}" if off else ""
    fl = f" {flag}" if flag else ""
    i = Ins(f"{op} {data}, {voff}, {srd}, {fmt(soff)} offen{o}{fl}", "vst",
            data.names() + voff.names() + srd.names() + _names(soff), [])
    i.data = set(data.names())
    return i


def wait(vm=None, lgkm=None):
    t = "s_waitcnt"
    if vm is not None:
        assert 0 <= vm <= 63
        t += f" vmcnt({vm})"
    if lgkm is not None:
        assert 0 <= lgkm <= 15
        t += f" lgkmcnt({lgkm})"
    i = Ins(t, "wait")
    i.lgkm, i.vm = lgkm, vm
    return i


def nop(n):
    assert 1 <= n <= 16
    i = Ins(f"s_nop {n - 1}", "nop", cost=4 * n)
    i.states = n
    return i


def barrier():
    return Ins("s_barrier", "bar")


def branch(op, label, rd=()):
    return Ins(f"{op} {label}", "br", rd)


def label(name):
    i = Ins(f"{name}:", "label")
    i.states = 0
    return i


def comment(t):
    i = Ins(f"; {t}", "comment")
    i.states = 0
    return i


def raw(txt, kind="salu", rd=(), wr=()):
    return Ins(txt, kind, rd, wr)


def swap32(a, b):
    return Ins(f"v_permlane32_swap_b32 {a}, {b}", "perm", a.names() + b.names(), a.names() + b.names())


def swap16(a, b):
    return Ins(f"v_permlane16_swap_b32 {a}, {b}", "perm", a.names() + b.names(), a.names() + b.names())


VALU_KINDS = ("valu", "trans", "perm")
MFMA_KINDS = ("mfma8", "mfma4")


def is_vreg(n):
    return n[0] in "va" and n[1:].isdigit()


def is_sreg(n):
    return (n[0] == "s" and n[1:].isdigit()) or n == "vcc"


def need_states(p, c):
    n = 0
    pk, ck = p.kind, c.kind
    if pk in VALU_KINDS:
        pw = {x for x in p.wr if is_vreg(x)}
        ps = {x for x in p.wr if is_sreg(x)}
        if ck in MFMA_KINDS and pw & c.rd:
            n = max(n, 2)
        if ck == "perm" and pw & c.rd:
            n = max(n, 2)
        if pk == "trans" and ck in ("valu", "perm") and pw & (c.rd | c.wr):
            n = max(n, 1)
        if pk == "trans" and ck in ("dsw", "vst", "dsr", "dma") and pw & c.rd:
            n = max(n, 1)
        if ck in VALU_KINDS and ("readfirstlane" in c.txt or "readlane" in c.txt) and pw & c.rd:
            n = max(n, 1)
        if ck in VALU_KINDS and ps & c.rd:
            n = max(n, 4 if ("readlane" in c.txt or "writelane" in c.txt) else 2)
        if ck in ("dma", "vst") and ps & c.rd:
            n = max(n, 5)
        if ck == "salu" and ps & c.rd:
            n = max(n, 1)
        if "exec" in p.wr and ck in MFMA_KINDS:
            n = max(n, 4)
    if pk in MFMA_KINDS:
        big = pk == "mfma8"
        d = p.wr
        if ck in MFMA_KINDS:
            ab = c.rd - set(c.srcc)
            if d & ab:
                n = max(n, 12 if big else 8)
            if d & set(c.srcc):
                if set(c.srcc) == d and ck == pk:
                    pass
                else:
                    n = max(n, 10 if big else 6)
            elif d & c.wr:
                n = max(n, 10 if big else 6)
        elif ck in VALU_KINDS:
            if d & (c.rd | c.wr):
                n = max(n, 12 if big else 8)
            if set(p.srcc) & c.wr:
                n = max(n, 7 if big else 3)
        elif ck in ("dsr", "dsw", "vst", "dma"):
            if d & (c.rd | c.wr):
                n = max(n, 12 if big else 8)
    if pk == "salu" and "m0" in p.wr and ck == "dma":
        n = max(n, 1)
    if pk == "salu" and "m0" in p.wr and ("movrel" in c.txt or "writelane" in c.txt) and "m0" in c.rd:
        n = max(n, 1)
    if pk == "vst" and ck in VALU_KINDS and p.data & c.wr:
        n = max(n, 2)
    if pk == "vst" and ck in ("dsr",) + MFMA_KINDS and p.data & c.wr:
        n = max(n, 1)
    return n


def required_pad(hist, c):
    dist = 0
    pad = 0
    for p in reversed(hist):
        if dist >= 24:
            break
        n = need_states(p, c)
        if n > dist:
            pad = max(pad, n - dist)
        dist += p.states
    return pad


def finalize(seq, pend=None, hist=None, old=24, log=None):
    out = list(hist or [])
    nh = len(out)
    pend = [[set(p), -1000] for p in (pend or [])]
    pos = 0
    for ins in seq:
        if ins.kind == "wait" and ins.lgkm is not None:
            if len(pend) > ins.lgkm:
                pend = pend[len(pend) - ins.lgkm:] if ins.lgkm else []
        elif ins.kind not in ("label", "comment"):
            touch = ins.rd | ins.wr
            k = -1
            for i, (d, _) in enumerate(pend):
                if d & touch:
                    k = i
            if k >= 0:
                while k + 1 < len(pend) and pos - pend[k + 1][1] >= old * 4:
                    k += 1
                n = len(pend) - 1 - k
                w = wait(lgkm=min(n, 15))
                out.append(w)
                pos += w.cost
                pend = pend[len(pend) - min(n, 15):] if n else []
        if ins.kind not in ("label", "comment"):
            pad = required_pad(out, ins)
            if pad:
                if log is not None:
                    log.append(f"pad {pad} before: {ins.txt}")
                while pad > 0:
                    q = min(pad, 16)
                    out.append(nop(q))
                    pos += 4 * q
                    pad -= q
        out.append(ins)
        pos += max(ins.cost, 16 if ins.kind == "mfma8" else 0)
        if ins.kind in ("dsr", "dsw"):
            pend.append([set(ins.wr), pos])
    return out[nh:], [p[0] for p in pend]


def check_path(name, *blocks):
    seq = []
    for b in blocks:
        seq += b
    bad = 0
    for i, c in enumerate(seq):
        if c.kind in ("label", "comment"):
            continue
        pad = required_pad(seq[max(0, i - 40):i], c)
        if pad:
            print(f"HAZARD on path {name}: need {pad} more states before [{i}] {c.txt}")
            bad += 1
    return bad


class Phase:
    def __init__(self, mfmas):
        self.m = mfmas
        self.gaps = [[] for _ in range(len(mfmas) + 1)]
        self.res = [0] * (len(mfmas) + 1)

    def cap(self, g):
        if g == 0:
            return 24
        return 24 if self.m[g - 1].kind == "mfma8" else 8

    def load(self, g):
        return sum(i.cost for i in self.gaps[g]) + self.res[g]

    def put(self, g, *ins):
        for i in ins:
            self.gaps[g].append(i)

    def spread(self, stream, g0, g1):
        gs = list(range(g0, g1 + 1))
        free = [max(self.cap(g) - self.load(g), 0) + 0.01 for g in gs]
        tot = sum(i.cost for i in stream)
        tf = sum(free)
        if tot > tf:
            ex = (tot - tf) / len(gs)
            free = [f + ex for f in free]
            tf = sum(free)
        k = 0
        acc = 0.0
        used = 0
        for g, f in zip(gs, free):
            acc += f * tot / tf
            while k < len(stream) and used + stream[k].cost / 2 <= acc:
                self.gaps[g].append(stream[k])
                used += stream[k].cost
                k += 1
        while k < len(stream):
            self.gaps[g1].append(stream[k])
            k += 1

    def emit(self):
        out = []
        for g in range(len(self.m)):
            out += self.gaps[g]
            out.append(self.m[g])
        out += self.gaps[len(self.m)]
        return out


def est_cycles(seq):
    t = 0
    pipe = 0
    for i in seq:
        if i.kind in MFMA_KINDS:
            t = max(t, pipe)
            pipe = t + (32 if i.kind == "mfma8" else 16)
            t += 8
        else:
            t += i.cost
    return max(t, pipe)


def slotcost(i):
    if i.kind in ("label", "comment"):
        return 0
    if i.kind in ("trans", "dma", "vst"):
        return 2
    if i.kind == "dsw":
        return 2
    return 1


class Sched:
    def __init__(self, mfmas, cap=2):
        self.m = mfmas
        n = len(mfmas)
        self.sc = [[] for _ in range(n + 1)]
        self.vec = [[] for _ in range(n + 1)]
        self.tail = [[] for _ in range(n + 1)]
        self.cap = [cap] * (n + 1)
        self.cap[0] = 0
        self.wres = [False] * (n + 1)

    def used(self, g):
        nsc = sum(1 for i in self.sc[g] if i.kind not in ("label", "comment")) + (1 if self.wres[g] else 0)
        return sum(slotcost(i) for i in self.vec[g] + self.tail[g]) + max(0, nsc - 1)

    def free(self, g):
        return self.cap[g] - self.used(g)

    def sc_free(self, g):
        return not self.wres[g] and not any(i.kind not in ("label", "comment") for i in self.sc[g])

    def put_sc(self, g, *ins):
        self.sc[g] += ins

    def put_sc_from(self, g, ins_list, gmax=None):
        for i in ins_list:
            while not self.sc_free(g):
                g += 1
            assert gmax is None or g <= gmax, (g, gmax, i.txt)
            self.sc[g].append(i)
        return g

    def put_vec(self, g, *ins):
        self.vec[g] += ins

    def put_vec_from(self, g, ins_list):
        for i in ins_list:
            while self.free(g) < slotcost(i):
                g += 1
            if i.kind in ("dsr", "dma", "dsw", "vst"):
                k = 0
                while k < len(self.vec[g]) and self.vec[g][k].kind in ("dsr", "dma", "dsw", "vst"):
                    k += 1
                self.vec[g].insert(k, i)
            else:
                self.vec[g].append(i)
        return g

    def _try_fill(self, ops, g0, g1, window, extra):
        n = len(ops)
        deps = [[] for _ in range(n)]
        for j in range(n):
            for i in range(j):
                a, b = ops[i], ops[j]
                raw = a.wr & b.rd
                if raw or (a.wr & b.wr) or (a.rd & b.wr):
                    deps[j].append((i, bool(raw) and a.kind == "trans"))
        place = [None] * n
        order = []
        nxt = 0
        for g in range(g0, g1 + 1):
            f = self.free(g) + (1 if g in extra else 0)
            while f > 0:
                pick = None
                cnt = 0
                cands = []
                for j in range(nxt, n):
                    if place[j] is not None:
                        continue
                    cnt += 1
                    if cnt > window:
                        break
                    e = getattr(ops[j], "earliest", 0)
                    if e > g:
                        continue
                    ok = True
                    for i, hard in deps[j]:
                        if place[i] is None or (hard and place[i] >= g):
                            ok = False
                            break
                    if ok and slotcost(ops[j]) <= f:
                        cands.append(j)
                if not cands:
                    break
                if f >= 2:
                    two = [j for j in cands if slotcost(ops[j]) == 2]
                    one = [j for j in cands if slotcost(ops[j]) == 1]
                    if two and (len(one) < 2 or two[0] < one[1]):
                        pick = two[0]
                    else:
                        pick = cands[0] if not one else one[0]
                else:
                    pick = cands[0]
                place[pick] = g
                order.append(pick)
                f -= slotcost(ops[pick])
                while nxt < n and place[nxt] is not None:
                    nxt += 1
            if nxt >= n:
                return place, order
        return None

    def fill(self, ops, g0, g1, window=10, name=""):
        extra = set()
        k = 0
        while True:
            r = self._try_fill(ops, g0, g1, window, extra)
            if r is not None:
                break
            k += 1
            span = g1 - g0 + 1
            assert k <= span, "cannot fit " + name
            extra = {g0 + int((i + 0.5) * span / k) for i in range(k)}
        place, order = r
        for j in order:
            self.vec[place[j]].append(ops[j])
        return max(place), k

    def emit(self):
        out = []
        for g in range(len(self.m) + 1):
            out += self.sc[g] + self.vec[g] + self.tail[g]
            if g < len(self.m):
                out.append(self.m[g])
        return out


def finalize2(seq, pend=None, hist=None, log=None):
    out = list(hist or [])
    nh = len(out)
    pend = [[set(p), -1] for p in (pend or [])]
    for ins in seq:
        if ins.kind == "wait" and ins.lgkm is not None:
            if len(pend) > ins.lgkm:
                pend = pend[len(pend) - ins.lgkm:] if ins.lgkm else []
        elif ins.kind not in ("label", "comment"):
            touch = ins.rd | ins.wr
            k = -1
            for i, (d, _) in enumerate(pend):
                if d & touch:
                    k = i
            if k >= 0:
                at = len(out)
                if ins.kind in MFMA_KINDS:
                    j = len(out) - 1
                    while j >= nh and out[j].kind not in MFMA_KINDS + ("label", "br", "bar"):
                        j -= 1
                    if j >= nh and out[j].kind in MFMA_KINDS and pend[k][1] < j:
                        at = j + 1
                n = sum(1 for p in pend[k + 1:] if p[1] < at)
                n = min(n, 15)
                out.insert(at, wait(lgkm=n))
                for p in pend:
                    if p[1] >= at:
                        p[1] += 1
                before = [p for p in pend if p[1] < at]
                after = [p for p in pend if p[1] >= at]
                pend = (before[len(before) - n:] if n else []) + after
        if ins.kind not in ("label", "comment"):
            pad = required_pad(out, ins)
            if pad:
                if log is not None:
                    log.append(f"pad {pad} before: {ins.txt}")
                while pad > 0:
                    q = min(pad, 16)
                    out.append(nop(q))
                    pad -= q
        out.append(ins)
        if ins.kind in ("dsr", "dsw"):
            pend.append([set(ins.wr), len(out) - 1])
    return out[nh:], [p[0] for p in pend]


def est16(seq):
    t = 0
    pipe = 0
    vec_ok = 0
    for i in seq:
        if i.kind in ("label", "comment"):
            continue
        if i.kind in MFMA_KINDS:
            t = max(t, pipe, vec_ok)
            pipe = t + (32 if i.kind == "mfma8" else 16)
            vec_ok = t + 8
            t += 4
        elif i.kind in ("salu", "wait", "nop", "bar", "br", "smem"):
            t += i.cost
        else:
            t = max(t, vec_ok) + 4 * slotcost(i)
    return max(t, pipe)
```

```python
import sys, struct, math
from asmlib import *

KN = "standalone__gqa_softmax__near_ridge_kernel"
SLOT = 12288
VRING = 6 * SLOT
MLBASE = 13 * SLOT
LDS_BYTES = 163840
CSCALE = 192 ** -0.5 * math.log2(math.e)


def f32bits(x):
    return struct.unpack("<I", struct.pack("<f", x))[0]


X = 4
O = {2: [V(4 * d, 4) for d in range(12)],
     3: [V(48 + 4 * d, 4) for d in range(12)],
     1: [A(216 + 4 * d, 4) for d in range(4)] + [V(96 + 4 * d, 4) for d in range(8)],
     0: [A(168 + 4 * d, 4) for d in range(12)],
     X: [A(120 + 4 * d, 4) for d in range(12)]}
S0 = {0: V(128, 8), 1: V(136, 8)}
SX = V(144, 8)
S1 = {"a": {2: V(152, 8), 3: V(160, 8)}, "b": {2: V(168, 8), 3: V(176, 8)}}
P0 = {"a": {0: V(184, 4), 1: V(188, 4)}, "b": {0: V(192, 4), 1: V(196, 4)}}
P1 = {2: V(200, 4), 3: V(204, 4)}
PX = V(208, 4)
NM = {t: V(212 + 4 * t, 4) for t in range(5)}
L = {t: V(232 + t) for t in range(5)}
vK = [V(237), V(238)]
vV = [V(239 + i) for i in range(4)]
voffK, voffV = V(243), V(244)
PS = [V(245), V(246)]
PSX = V(247)
TE = [V(248 + i) for i in range(6)]
X1 = V(255)
Q = {t: [A(24 * t + 4 * ks, 4) for ks in range(6)] for t in range(5)}
F = [A(232 + 4 * i, 4) for i in range(6)]

srdQ, srdK, srdV, srdO, srdW = S(12, 4), S(16, 4), S(20, 4), S(24, 4), S(28, 4)
sW, sTHR, sU, sG, sDMA, sD, sDo, sPOS = S(32), S(33), S(34), S(35), S(36), S(37), S(38), S(39)
sT0, sT1, sT2, sT3 = S(40), S(41), S(42), S(43)
sW3072, sWodd = S(44), S(45)
sC2 = S(46, 2)
sST = S(50, 2)
sSI = S(52)


class Cfg:
    ld = "nt"
    st = ""
    stamps = False
    rt = False
    thr = 2.0 ** 24
    barback = 9
    verbose = False
    inner = 1
    dlate = 0
    pref = True
    align8 = False
    apad = 0
    D = 3
    lead = 5


def gen(cfg):
    logs = []

    def dma3(voff, srd, soff, base_sreg, const):
        return [[salu("s_add_u32", "m0", base_sreg, const + t * 896), dma(voff, srd, soff, t * 128, cfg.ld)]
                for t in range(3)]

    tctr = [0]

    def sm_half(Sr, Pr, kt, ps, first, earliest=0):
        out = []
        tt = []
        for e in range(4):
            t = TE[tctr[0] % len(TE)]
            tctr[0] += 1
            tt.append(t)
            i = trans("v_exp_f32", t, Sr[4 * kt + e])
            i.earliest = earliest
            out.append(i)
            if e == 1:
                out.append(valu("v_add_f32", ps, tt[0], tt[1]) if first else valu("v_add_f32", ps, ps, tt[0]))
                if not first:
                    out.append(valu("v_add_f32", ps, ps, tt[1]))
                out.append(valu("v_cvt_pk_bf16_f32", Pr[2 * kt], tt[0], tt[1]))
            if e == 3:
                out.append(valu("v_add_f32", ps, ps, tt[2]))
                out.append(valu("v_add_f32", ps, ps, tt[3]))
                out.append(valu("v_cvt_pk_bf16_f32", Pr[2 * kt + 1], tt[2], tt[3]))
        return out

    def sm_tile(Sr, Pr, ps, e0=0, e1=0):
        return sm_half(Sr, Pr, 0, ps, True, e0) + sm_half(Sr, Pr, 1, ps, False, e1)

    def allrows(op, x, t):
        return [valu("v_mov_b32", t, x), swap16(x, t), valu(op, x, x, t),
                valu("v_mov_b32", t, x), swap32(x, t), valu(op, x, x, t)]

    def rowmax8(Sr, m, t):
        o = [valu("v_max3_f32", m, Sr[0], Sr[1], Sr[2]), valu("v_max3_f32", t, Sr[3], Sr[4], Sr[5]),
             valu("v_max3_f32", m, m, Sr[6], Sr[7]), valu("v_max_f32", m, m, t)]
        return o + allrows("v_max_f32", m, t)

    def stamp():
        if not cfg.stamps:
            return []
        return [raw(f"{'s_memrealtime' if cfg.rt else 's_memtime'} {sST}", "smem", [], sST.names()), smov("m0", sSI),
                wait(lgkm=0),
                raw(f"v_writelane_b32 {X1}, {sST[0]}, m0", "valu", sST[0].names() + ["m0"] + X1.names(), X1.names()),
                salu("s_add_u32", sSI, sSI, 1)]

    def kfrag(i, buf):
        kt, ks = i // 6, i % 6
        return dsr128(buf, vK[ks % 2], kt * 6144 + (ks // 2) * 1024)

    def vfrag(db, buf):
        a_ = vV[db % 4]
        return [dsrtr(buf[0:2], a_, (db // 4) * 1024), dsrtr(buf[2:4], a_, 6144 + (db // 4) * 1024)]

    ENTRY_PEND = [set(F[0].names()), set(F[1].names())]

    pro = []
    a = pro.append
    T = [V(32 + i) for i in range(32)]
    vL = T[0]
    a(scmp("s_cmp_ge_u32", S(2), 256))
    a(branch("s_cbranch_scc1", "L_end", ["scc"]))
    a(raw("s_load_dwordx4 s[4:7], s[0:1], 0", "smem", [], ["s4", "s5", "s6", "s7"]))
    a(raw("s_load_dwordx4 s[8:11], s[0:1], 16", "smem", [], ["s8", "s9", "s10", "s11"]))
    if cfg.stamps:
        a(raw("s_load_dwordx2 s[28:29], s[0:1], 40", "smem", [], ["s28", "s29"]))
        a(smov(sSI, 0))
        a(valu("v_mov_b32", X1, 0))
    vmq = []
    if cfg.pref:
        a(raw("s_getpc_b64 s[48:49]", "salu", [], ["s48", "s49"]))
        a(label("L_pc"))
        a(valu("v_lshlrev_b32", T[1], 7, V(0)))
        a(raw(f"v_min_u32 {T[1]}, L_end-L_pc, {T[1]}", "valu", T[1].names(), T[1].names()))
        a(raw(f"global_load_dword {V(254)}, {T[1]}, s[48:49]", "dma", T[1].names() + ["s48", "s49"], []))
        vmq.append("code")
    a(valu("v_lshrrev_b32", T[2], 6, V(0)))
    a(valu("v_and_b32", vL, 63, V(0)))
    a(valu("v_readfirstlane_b32", sW, T[2]))
    a(salu("s_mul_i32", sT0, S(2), 110592, scc=False))
    a(salu("s_mul_i32", sT1, S(2), 196608, scc=False))
    r8, j8, rh, E, r384 = T[3], T[4], T[5], T[6], T[7]
    a(valu("v_lshrrev_b32", r8, 3, vL))
    a(valu("v_and_b32", j8, 7, vL))
    a(valu("v_lshrrev_b32", rh, 4, vL))
    a(valu("v_mul_u32_u24", r384, 384, r8))
    a(valu("v_xor_b32", E, j8, rh))
    a(valu("v_lshl_add_u32", E, E, 4, r384))
    a(salu("s_mul_i32", sW3072, sW, 3072, scc=False))
    a(salu("s_and_b32", sWodd, sW, 1))
    a(salu("s_lshl_b32", sT2, sWodd, 6))
    a(valu("v_xor_b32", voffK, sT2, E))
    a(valu("v_add_u32", voffK, sW3072, voffK))
    Eo = T[8]
    a(valu("v_xor_b32", Eo, 64, E))
    a(valu("v_lshlrev_b32", T[9], 1, rh))
    a(valu("v_xor_b32", T[9], T[9], j8))
    a(valu("v_lshl_add_u32", voffV, T[9], 4, r384))
    a(valu("v_add_u32", voffV, sW3072, voffV))
    a(salu("s_mul_i32", sT3, sW, 24576, scc=False))
    a(salu("s_lshr_b32", sT2, sW, 1))
    a(salu("s_mul_i32", sT2, sT2, 6144, scc=False))
    a(wait(lgkm=0))
    for srd, lo, off, sz in ((srdK, 6, sT1, 196608), (srdQ, 4, sT0, 110592), (srdV, 8, sT1, 196608),
                             (srdO, 10, sT0, 110592)):
        a(salu("s_add_u32", srd[0], S(lo), off))
        a(salu("s_addc_u32", srd[1], S(lo + 1), 0, rd_scc=True))
        a(smov(srd[2], sz))
        a(smov(srd[3], 0x20000))
    if cfg.stamps:
        a(smov(srdW[2], 0x10000000))
        a(smov(srdW[3], 0x20000))
        a(raw(f"s_memrealtime {sST}", "smem", [], sST.names()))
        a(wait(lgkm=0))
        a(raw(f"v_writelane_b32 {X1}, {sST[0]}, 62", "valu", sST[0].names() + X1.names(), X1.names()))
    pro += stamp()

    def issue(pairs, lab, setg):
        for k, (m, d) in enumerate(pairs):
            a(m)
            if k == 0:
                a(setg)
            a(d)
            vmq.append(lab)

    def vmwait(*labs):
        last = max(i for i, l in enumerate(vmq) if l in labs)
        return len(vmq) - 1 - last

    def ldK(u):
        issue(dma3(voffK, srdK, sG, sW3072, (u % 6) * SLOT), f"K{u}", smov(sG, u * SLOT))

    def ldV(u):
        issue(dma3(voffV, srdV, sG, sW3072, VRING + ((u + 1) % 6) * SLOT), f"V{u}", smov(sG, u * SLOT))

    QORD = [X, 0, 1, 2, 3]
    D = cfg.D

    def ldQ(t, i):
        setg = salu("s_add_u32", sG, sT3, (2 * t + i) * 3072)
        issue(dma3(Eo if i else E, srdQ, sG, sW3072, (2 + t + 6 * i) * SLOT), f"Q{t}", setg)

    def ldX():
        issue(dma3(voffK, srdQ, sG, sW3072, 12 * SLOT), f"Q{X}", smov(sG, 256 * 384))

    dq = [(lambda: ldK(0), None), (ldX, None)]
    for t in range(4):
        dq += [(lambda t=t: ldQ(t, 0), None), (lambda t=t: ldQ(t, 1), None)]
    for g in range(D):
        need = g - 1 if 1 <= g <= 4 else None
        dq += [(lambda g=g: ldK(g + 1), need), (lambda g=g: ldV(g), need)]
    consumed = set()

    def pump(k):
        for _ in range(k):
            if dq:
                fn, need = dq[0]
                assert need is None or need in consumed, need
                dq.pop(0)
                fn()

    pump(4)
    a(smov(sC2[0], f32bits(CSCALE)))
    a(smov(sC2[1], f32bits(CSCALE)))
    a(smov(sTHR, f32bits(cfg.thr)))
    a(smov(sPOS, SLOT))
    a(smov(sD, SLOT))
    a(smov(sU, 0))
    a(salu("s_add_u32", sDMA, sW3072, ((D + 1) % 6) * SLOT))
    r16, cg, t1, t2 = T[10], T[11], T[12], T[13]
    a(valu("v_and_b32", r16, 15, vL))
    a(valu("v_lshrrev_b32", cg, 4, vL))
    a(valu("v_and_b32", t1, 7, r16))
    a(valu("v_lshlrev_b32", t1, 7, t1))
    a(valu("v_lshrrev_b32", t2, 1, r16))
    a(valu("v_xor_b32", t2, t2, cg))
    a(valu("v_lshl_add_u32", t1, t2, 4, t1))
    a(valu("v_lshrrev_b32", t2, 3, r16))
    a(valu("v_mul_u32_u24", vK[0], 3072, t2))
    a(valu("v_add_u32", vK[0], vK[0], t1))
    a(valu("v_xor_b32", vK[1], 64, vK[0]))
    vQs = [T[14], T[15], T[16], T[17]]
    a(valu("v_mul_u32_u24", vQs[0], 6 * SLOT, t2))
    a(valu("v_add_u32", vQs[0], vQs[0], t1))
    a(salu("s_add_u32", sT0, sW3072, 2 * SLOT))
    a(valu("v_add_u32", vQs[0], sT0, vQs[0]))
    a(valu("v_xor_b32", vQs[1], 64, vQs[0]))
    a(salu("s_add_u32", sT0, sT2, 12 * SLOT))
    a(valu("v_add_u32", vQs[2], sT0, vK[0]))
    a(valu("v_add_u32", vQs[3], sT0, vK[1]))
    a(valu("v_bfe_u32", t1, vL, 2, 3))
    a(valu("v_lshlrev_b32", t2, 7, t1))
    a(valu("v_lshrrev_b32", t1, 1, t1))
    a(valu("v_lshl_add_u32", t2, t1, 5, t2))
    a(valu("v_and_b32", t1, 3, vL))
    a(valu("v_lshl_add_u32", t2, t1, 3, t2))
    a(valu("v_lshrrev_b32", t1, 5, vL))
    a(valu("v_mul_u32_u24", t1, 3072, t1))
    a(valu("v_add_u32", t2, t2, t1))
    a(valu("v_add_u32", vV[0], VRING + SLOT, t2))
    for i in range(1, 4):
        a(valu("v_xor_b32", vV[i], i << 5, vV[0]))
    Z = V(TE[0].i, 4)
    for i in range(4):
        a(valu("v_mov_b32", Z[i], 0))
    for t in range(5):
        a(valu("v_mov_b32", L[t], 0))
    for g in [V(64 + 16 * i, 16) for i in range(4)] + [A(120 + 16 * i, 16) for i in range(7)]:
        a(mfma32(g, Z, Z, 0))
    KF = ([S1["a"][2][0:4], S1["a"][2][4:8], S1["a"][3][0:4], S1["a"][3][4:8], P0["b"][0], P0["b"][1], P1[2], P1[3]]
          + F[2:6])
    pump(cfg.lead - 4)
    a(wait(vm=vmwait("K0", f"Q{X}")))
    a(barrier())
    pro += stamp()
    RAW = [V(4 * i, 4) for i in range(6)]
    UT = [V(24 + 2 * i, 2) for i in range(4)]
    Sdst = {0: S0[0], 1: S0[1], X: SX, 2: S1["b"][2], 3: S1["b"][3]}
    for t in QORD:
        if t != X:
            pro.extend(stamp())
            a(wait(vm=vmwait(f"Q{t}")))
            pro.extend(stamp())
        for ks in range(6):
            if t == X:
                a(dsr128(RAW[ks], vQs[2 + ks % 2], (ks // 2) * 1024))
            else:
                a(dsr128(RAW[ks], vQs[ks % 2], t * SLOT + (ks // 2) * 1024))
        if t == X:
            for i in range(12):
                a(kfrag(i, KF[i]))
            for i in range(2):
                a(valu("v_add_u32", vK[i], sPOS, vK[i]))
        pump(1)
        for ks in range(6):
            for r in range(4):
                u2 = UT[r]
                a(valu("v_lshlrev_b32", u2[0], 16, RAW[ks][r]))
                a(valu("v_and_b32", u2[1], 0xFFFF0000, RAW[ks][r]))
            for r in range(4):
                a(valu("v_pk_mul_f32", UT[r], UT[r], sC2))
            for r in range(4):
                a(valu("v_cvt_pk_bf16_f32", UT[r][0], UT[r][0], UT[r][1]))
            for r in range(4):
                a(valu("v_accvgpr_write_b32", Q[t][ks][r], UT[r][0]))
            if ks >= 1:
                for kt in range(2):
                    Dd = Sdst[t][4 * kt:4 * kt + 4]
                    a(mfma16(Dd, KF[6 * kt + ks - 1], Q[t][ks - 1], 0 if ks == 1 else Dd))
        consumed.add(t)
        for kt in range(2):
            Dd = Sdst[t][4 * kt:4 * kt + 4]
            a(mfma16(Dd, KF[6 * kt + 5], Q[t][5], Dd))
        pump(1)
        if t == QORD[-1]:
            for i in range(4):
                a(valu("v_mov_b32", Z[i], 0))
            for g in [V(16 * i, 16) for i in range(2)]:
                a(mfma32(g, Z, Z, 0))
        m_, tt_ = TE[4], TE[5]
        pro += rowmax8(Sdst[t], m_, tt_)
        for i in range(8):
            a(valu("v_sub_f32", Sdst[t][i], Sdst[t][i], m_))
        for i in range(4):
            a(valu("v_sub_f32", NM[t][i], 0, m_))
        if t in (0, 1):
            pro += sm_tile(S0[t], P0["a"][t], L[t])
        if t == X:
            pro += sm_half(SX, PX, 0, PSX, True)
    pro += stamp()
    a(wait(vm=vmwait("K1", "V0")))
    a(barrier())
    pro += stamp()
    a(kfrag(0, F[0]))
    a(kfrag(1, F[1]))
    pump(100)
    assert vmwait("K1", "V0") == 6 * (D - 1)
    for g in [V(32 + 16 * i, 16) for i in range(2)]:
        a(mfma32(g, Z, Z, 0))
    a(valu("v_add_u32", voffK, SLOT, voffK))
    a(smov(sG, D * SLOT))
    a(scmp("s_cmp_lg_u32", sWodd, 0))
    a(branch("s_cbranch_scc1", "L_enterB", ["scc"]))
    pro, pend = finalize2(pro, log=logs)
    assert pend[-2:] == ENTRY_PEND, pend
    proB = [label("L_enterB")]
    for t in (2, 3):
        for i in range(8):
            proB.append(valu("v_mov_b32", S1["a"][t][i], S1["b"][t][i]))
    for t in (0, 1):
        for i in range(4):
            proB.append(valu("v_mov_b32", P0["b"][t][i], P0["a"][t][i]))
    proB.append(branch("s_branch", "L_B"))
    proB, _ = finalize2(proB, hist=pro[-30:], log=logs)

    slow_blocks = []

    def slow(name, ret, items):
        o = [label(name), nop(16)]
        for t, Sr, Pr, ps, Sn in items:
            d, f, tmp = TE[0], TE[1], TE[2]
            o += rowmax8(Sr, d, tmp)
            o.append(valu("v_max_f32", d, 0, d))
            o.append(valu("v_sub_f32", f, 0, d))
            o.append(trans("v_exp_f32", f, f))
            for i in range(4):
                o.append(valu("v_sub_f32", NM[t][i], NM[t][i], d))
            for i in range(8):
                o.append(valu("v_sub_f32", Sr[i], Sr[i], d))
            if Sn is not None:
                for i in range(8):
                    o.append(valu("v_sub_f32", Sn[i], Sn[i], d))
            o.append(valu("v_mul_f32", L[t], f, L[t]))
            for g in O[t]:
                for i in range(4):
                    r = g[i]
                    if r.f == "v":
                        o.append(valu("v_mul_f32", r, f, r))
                    else:
                        tq = TE[2 + i % 2]
                        o.append(valu("v_accvgpr_read_b32", tq, r))
                        o.append(valu("v_mul_f32", tq, f, tq))
                        o.append(valu("v_accvgpr_write_b32", r, tq))
            o += sm_tile(Sr, Pr, ps)
        o.append(nop(4))
        o.append(branch("s_branch", ret))
        o, _ = finalize2(o)
        slow_blocks.append(o)

    def chk(pss):
        t = TE[tctr[0] % len(TE)]
        tctr[0] += 1
        o = [valu("v_max3_f32", t, *pss) if len(pss) == 3 else valu("v_max_f32", t, *pss)]
        o.append(valu("v_cmp_lt_f32", "vcc", sTHR, t))
        return o

    def block(B):
        isA = B == "A"
        sw, sr = ("a", "b") if isA else ("b", "a")
        pr, pw = ("a", "b") if isA else ("b", "a")
        Sw = {0: S0[0], 1: S0[1], 2: S1[sw][2], 3: S1[sw][3], X: SX}
        Pr = {0: P0[pr][0], 1: P0[pr][1], 2: P1[2], 3: P1[3], X: PX}
        qt = [0, 1, 2, 3] + ([] if isA else [X])
        pt = [0, 1, 2, 3] + ([X] if isA else [])
        mf, kpos, kend, last = [], {}, {}, {}
        for i in range(12):
            kt, ks = i // 6, i % 6
            kpos[i] = len(mf)
            for t in qt:
                Dd = Sw[t][4 * kt:4 * kt + 4]
                last[(t, kt)] = len(mf)
                mf.append(mfma16(Dd, F[i % 3], Q[t][ks], NM[t] if ks == 0 else Dd))
            kend[i] = len(mf)
        nq = len(mf)
        vb = lambda db: [F[3], F[4], F[5], F[2]][db % 4]
        vpos, vend = {}, {}
        for db in range(12):
            vpos[db] = len(mf)
            for t in pt:
                mf.append(mfma16(O[t][db], vb(db), Pr[t], O[t][db]))
            vend[db] = len(mf)
        n = len(mf)
        sc = Sched(mf)
        gb = n - cfg.barback
        for i in range(1, 12):
            sc.wres[kpos[i]] = True
        for db in range(12):
            if vpos[db] < gb:
                sc.wres[vpos[db]] = True
        assert not sc.wres[gb]
        sc.wres[n] = True
        sc.put_vec_from(1, [kfrag(2, F[2])])
        for i in range(3, 12):
            sc.put_vec_from(kend[i - 3], [kfrag(i, F[i % 3])])
        for db in range(3):
            sc.put_vec_from(kpos[9 + db] + 1, vfrag(db, vb(db)))
        sc.put_vec_from(nq, vfrag(3, vb(3)))
        gl = 0
        for db in range(4, 12):
            gl = sc.put_vec_from(vend[db - 4], vfrag(db, vb(db)))
        assert gl < gb
        if cfg.inner == 1:
            sc.put_sc(gb, *stamp())
        sc.put_sc(gb, wait(vm=6 * (D - 1), lgkm=0), barrier())
        if cfg.inner == 1:
            sc.put_sc(gb, *stamp())
        if cfg.inner == 2 and cfg.stamps:
            st_ = stamp()
            sc.put_sc(gb, st_[1], st_[4], st_[3], st_[0])
        sc.put_vec_from(gb, [kfrag(0, F[0]), kfrag(1, F[1])])
        dmask = sum(1 << u for u in range(32) if (u + D + 1) % 6 == 5)
        g = sc.put_sc_from(1, [scmp("s_bitcmp1_b32", 0x10410, sU),
                               salu("s_cselect_b32", sD, (-5 * SLOT) & 0xFFFFFFFF, sPOS, scc=False, rd_scc=True),
                               scmp("s_bitcmp1_b32", dmask, sU),
                               salu("s_cselect_b32", sDo, (-5 * SLOT) & 0xFFFFFFFF, sPOS, scc=False, rd_scc=True)])
        dm = dma3(voffK, srdK, sG, sDMA, 0) + dma3(voffV, srdV, sG, sDMA, VRING)
        d0, d1 = (nq + 4, gb - 6) if isA else (g + 2, nq - 16)
        for k, (m_, d_) in enumerate(dm):
            g = d0 + (d1 - d0) * k // 5
            while not (sc.sc_free(g) and sc.free(g + 1) >= 2):
                g += 1
            sc.put_sc(g, m_)
            sc.put_vec(g + 1, d_)
        assert g + 1 < gb
        g = sc.put_sc_from(g + 2, [salu("s_add_u32", sDMA, sDMA, sDo), salu("s_add_u32", sG, sG, SLOT),
                                   scmp("s_cmp_ge_u32", sU, 15 - D),
                                   salu("s_cselect_b32", sDMA, LDS_BYTES, sDMA, scc=False, rd_scc=True),
                                   salu("s_add_u32", sU, sU, 1)], gmax=n - 4)
        gc1 = nq + 2
        assert sc.sc_free(gc1)
        sc.put_sc(gc1, branch("s_cbranch_vccnz", f"L_slow1{B}", ["vcc"]), label(f"L_ret1{B}"))
        gc0 = n - 2
        assert sc.sc_free(gc0) and gc0 >= vpos[11] + 2
        sc.put_sc(gc0, branch("s_cbranch_vccnz", f"L_slow0{B}", ["vcc"]), label(f"L_ret0{B}"))
        sc.put_vec(gc0, valu("v_add_f32", L[0], L[0], PS[0]), valu("v_add_f32", L[1], L[1], PS[1]))
        assert sc.sc_free(n - 1)
        sc.put_sc(n - 1, scmp("s_cmp_eq_u32", sU, 15))
        sc.tail[n].append(branch("s_cbranch_scc1", "L_tailB" if isA else "L_tailA", ["scc"]))
        if not isA:
            sc.tail[n].append(branch("s_branch", "L_A"))
        st1 = sm_tile(S1[sr][2], P1[2], PS[0]) + sm_tile(S1[sr][3], P1[3], PS[1])
        if isA:
            st1 += sm_half(SX, PX, 1, PSX, False) + chk([PS[0], PS[1], PSX])
        else:
            st1 += chk([PS[0], PS[1]]) + sm_half(SX, PX, 0, PSX, True, last[(X, 0)] + 5)
        e1, x1 = sc.fill(st1, 1, gc1 - 1, name=f"{B}.st1")
        items = [(t, S1[sr][t], P1[t], PS[t - 2], S1[sw][t]) for t in (2, 3)]
        if isA:
            items.append((X, SX, PX, PSX, None))
        slow(f"L_slow1{B}", f"L_ret1{B}", items)
        st0 = [valu("v_add_f32", L[2], L[2], PS[0]), valu("v_add_f32", L[3], L[3], PS[1])]
        if isA:
            st0.append(valu("v_add_f32", L[X], L[X], PSX))
        st0 += [valu("v_add_u32", x, sD, x) for x in vK]
        st0 += sm_tile(S0[0], P0[pw][0], PS[0]) + sm_tile(S0[1], P0[pw][1], PS[1]) + chk([PS[0], PS[1]])
        adv = [valu("v_add_u32", x, sD, x) for x in vV]
        sc.put_vec_from(n - 1, adv[0:2])
        for i in adv[2:4]:
            i.earliest = gl + 1
        e0, x0 = sc.fill(st0 + adv[2:4], gc1, gc0 - 1, name=f"{B}.st0")
        slow(f"L_slow0{B}", f"L_ret0{B}", [(t, S0[t], P0[pw][t], PS[t], None) for t in (0, 1)])
        logs.append(f"block {B}: st1 ends gap {e1}/{gc1 - 1} (+{x1} overfull), st0 ends {e0}/{gc0 - 1} (+{x0})")
        seq = [label(f"L_{B}")] + sc.emit()
        k = max(i for i, x in enumerate(seq) if x.kind in MFMA_KINDS)
        seq.insert(k + 1, wait(lgkm=1))
        out, pend = finalize2(seq, pend=ENTRY_PEND[1:], log=logs)
        assert pend[-1:] == ENTRY_PEND[1:], pend
        return out

    blkA = block("A")
    blkB = block("B")
    pro[-2:-2] = [wait(lgkm=1)]

    VF = [A(4 * db, 4) for db in range(12)]

    def tail(B):
        isA = B == "A"
        sr = "b" if isA else "a"
        pr = "a" if isA else "b"
        mf = []
        for db in range(12):
            for t in (0, 1):
                mf.append(mfma16(O[t][db], VF[db], P0[pr][t], O[t][db]))
        sc = Sched(mf, cap=3)
        n = len(mf)
        pre = []
        for db in range(4):
            pre += vfrag(db, VF[db])
        for db in range(4, 12):
            sc.put_vec_from(2 * (db - 4) + 1, vfrag(db, VF[db]))
        st = []
        if isA:
            st += sm_half(SX, PX, 1, PSX, False)
        st += sm_tile(S1[sr][2], P1[2], PS[0]) + sm_tile(S1[sr][3], P1[3], PS[1])
        st += chk([PS[0], PS[1], PSX] if isA else [PS[0], PS[1]])
        pre += st[:10]
        sc.cap[n] = 1000
        sc.fill(st[10:], 1, n, name="tail")
        seq = [label(f"L_tail{B}")] + stamp() + pre + sc.emit()
        seq += [branch("s_cbranch_vccnz", f"L_slowT{B}", ["vcc"]), label(f"L_retT{B}"),
                valu("v_add_f32", L[2], L[2], PS[0]), valu("v_add_f32", L[3], L[3], PS[1])]
        items = [(t, S1[sr][t], P1[t], PS[t - 2], None) for t in (2, 3)]
        if isA:
            seq.append(valu("v_add_f32", L[X], L[X], PSX))
            items.append((X, SX, PX, PSX, None))
            for db in range(12):
                seq.append(mfma16(O[X][db], VF[db], PX, O[X][db]))
        else:
            seq.append(branch("s_branch", "L_fin"))
        slow(f"L_slowT{B}", f"L_retT{B}", items)
        out, pend = finalize2(seq, pend=ENTRY_PEND[1:], log=logs)
        assert not pend, pend
        return out

    tailB = tail("B")
    tailA = tail("A")

    fin = [label("L_fin")] + stamp()
    a = fin.append
    E_ = [V(128 + i) for i in range(72)]
    lane, q16, gq, t1, t2, t3 = E_[0], E_[1], E_[2], E_[3], E_[4], E_[5]
    INV = {t: V(E_[6].i + 2 * t, 2) for t in range(4)}
    wa = [E_[14 + i] for i in range(4)]
    ra = [E_[18 + i] for i in range(3)]
    so, xw, xr, ma = E_[21], E_[22], E_[23], E_[24]
    ml = V(E_[26].i, 2)
    MLo = [V(E_[28].i, 2), V(E_[30].i, 2)]
    TMP = [V(E_[32].i + 4 * i, 4) for i in range(4)]
    DT = [V(E_[48].i + 4 * i, 4) for i in range(6)]
    pre = []
    b = pre.append
    b(valu("v_mbcnt_lo_u32_b32", lane, -1, 0))
    b(valu("v_mbcnt_hi_u32_b32", lane, -1, lane))

    def inv_of(t):
        return allrows("v_add_f32", L[t], t1) + [trans("v_rcp_f32", INV[t][0], L[t])]

    pre += inv_of(0)
    b(valu("v_and_b32", q16, 15, lane))
    b(valu("v_lshrrev_b32", gq, 4, lane))
    b(salu("s_mul_i32", sT0, sW, 24576, scc=False))
    b(valu("v_mul_u32_u24", t2, 384, q16))
    b(valu("v_and_b32", t3, 7, q16))
    b(valu("v_lshrrev_b32", t1, 1, gq))
    b(valu("v_xor_b32", t3, t3, t1))
    b(valu("v_lshl_add_u32", t2, t3, 4, t2))
    b(valu("v_and_b32", t3, 1, gq))
    b(valu("v_lshl_add_u32", t2, t3, 3, t2))
    b(valu("v_add_u32", wa[0], sT0, t2))
    for i in range(1, 4):
        b(valu("v_xor_b32", wa[i], i << 5, wa[0]))

    def epi_tile(t):
        o = []
        for db in range(12):
            g = O[t][db]
            src = g
            if g.f == "a":
                src = TMP[db % 4]
                for i in range(4):
                    o.append(valu("v_accvgpr_read_b32", src[i], g[i]))
            o.append(valu("v_pk_mul_f32", src[0:2], src[0:2], INV[t], extra="op_sel_hi:[1,0]"))
            o.append(valu("v_pk_mul_f32", src[2:4], src[2:4], INV[t], extra="op_sel_hi:[1,0]"))
            o.append(valu("v_cvt_pk_bf16_f32", src[0], src[0], src[1]))
            o.append(valu("v_cvt_pk_bf16_f32", src[1], src[2], src[3]))
            o.append(dsw64(wa[db % 4], src[0:2], t * 6144 + (db // 4) * 128))
        return o

    def readback(t, dst):
        return [dsr128(dst[i], ra[i % 3], t * 6144 + (i // 3) * 3072) for i in range(6)]

    def stores(t, dst):
        o = []
        for i in range(6):
            off = t * 6144 + i * 1024
            o.append(smov(sT3, off & ~4095))
            o.append(vstore(dst[i], so, srdO, sT3, off & 4095, cfg.st))
        return o

    addr2 = []
    c = addr2.append
    for i in range(3):
        c(valu("v_add_u32", t1, 64 * i, lane))
        c(valu("v_mul_u32_u24", t2, 2731, t1))
        c(valu("v_bfe_u32", t2, t2, 16, 3))
        c(valu("v_xor_b32", t1, t1, t2))
        c(valu("v_lshl_add_u32", ra[i], t1, 4, sT0))
    c(valu("v_lshl_add_u32", so, lane, 4, sT0))
    mf = []
    for t in (2, 3):
        for db in range(12):
            mf.append(mfma16(O[t][db], VF[db], P1[t], O[t][db]))
    st = pre + epi_tile(0) + addr2 + readback(0, DT) + inv_of(1)
    k = 0
    for m_ in mf:
        fin.append(m_)
        fin += st[k:k + 3]
        k += 3
    fin += st[k:]
    e1 = epi_tile(1)
    fin += e1[:20]
    fin += stores(0, DT)
    fin += e1[20:]
    D1 = [V(96 + 4 * i, 4) for i in range(6)]
    fin += readback(1, D1)
    a(salu("s_lshr_b32", sT1, sW, 1))
    a(salu("s_mul_i32", sT1, sT1, 3 * SLOT, scc=False))
    a(salu("s_add_u32", sT1, sT1, 8 * SLOT))
    a(salu("s_mul_i32", sT2, sWodd, SLOT, scc=False))
    a(salu("s_add_u32", sT2, sT2, sT1))
    a(valu("v_lshl_add_u32", xw, lane, 4, sT2))
    a(salu("s_mul_i32", sT2, sWodd, 6144, scc=False))
    a(salu("s_add_u32", sT2, sT2, sT1))
    a(valu("v_lshl_add_u32", xr, lane, 4, sT2))
    for db in range(12):
        a(dsw128(xw, O[X][db], db * 1024))
    fin += allrows("v_add_f32", L[X], t1)
    a(valu("v_mov_b32", ml[0], NM[X][0]))
    a(valu("v_mov_b32", ml[1], L[X]))
    a(salu("s_lshr_b32", sT1, sW, 1))
    a(salu("s_lshl_b32", sT1, sT1, 8))
    a(salu("s_add_u32", sT1, sT1, MLBASE))
    a(valu("v_lshl_add_u32", ma, q16, 3, sT1))
    a(salu("s_lshl_b32", sT2, sWodd, 7))
    a(valu("v_add_u32", t1, sT2, ma))
    a(dsw64(t1, ml))
    fin += inv_of(2)
    fin += stores(1, D1)
    fin += epi_tile(2)
    D2 = [V(4 * i, 4) for i in range(6)]
    fin += readback(2, D2)
    fin += inv_of(3)
    e3 = epi_tile(3)
    fin += e3[:15]
    fin += stores(2, D2)
    fin += e3[15:]
    D3 = [V(48 + 4 * i, 4) for i in range(6)]
    fin += readback(3, D3)
    a(wait(lgkm=6))
    a(barrier())
    XS = [[V(24 + 4 * k, 4) for k in range(6)], [V(72 + 4 * k, 4) for k in range(6)]]
    for s_ in range(2):
        a(dsr64(MLo[s_], ma, s_ * 128))
    for s_ in range(2):
        for k in range(6):
            a(dsr128(XS[s_][k], xr, s_ * SLOT + k * 1024))
    fin += stores(3, D3)
    a(valu("v_min_f32", t1, MLo[0][0], MLo[1][0]))
    for s_ in range(2):
        a(valu("v_sub_f32", MLo[s_][0], t1, MLo[s_][0]))
    for s_ in range(2):
        a(trans("v_exp_f32", MLo[s_][0], MLo[s_][0]))
    a(valu("v_mul_u32_u24", t3, 384, q16))
    a(valu("v_mul_f32", t2, MLo[0][0], MLo[0][1]))
    a(valu("v_fma_f32", t2, MLo[1][0], MLo[1][1], t2))
    a(trans("v_rcp_f32", t2, t2))
    a(valu("v_and_b32", t1, 1, gq))
    a(valu("v_lshl_add_u32", t3, t1, 5, t3))
    a(valu("v_lshrrev_b32", t1, 1, gq))
    a(valu("v_lshl_add_u32", t3, t1, 4, t3))
    for s_ in range(2):
        a(valu("v_mul_f32", MLo[s_][0], MLo[s_][0], t2))
    a(salu("s_lshr_b32", sT1, sW, 1))
    a(salu("s_mul_i32", sT1, sT1, 6144, scc=False))
    a(salu("s_mul_i32", sT2, sWodd, 192, scc=False))
    a(salu("s_add_u32", sT1, sT1, sT2))
    a(salu("s_add_u32", sT1, sT1, 256 * 384))
    for k in range(6):
        for h in range(2):
            x0, x1 = XS[0][k][2 * h:2 * h + 2], XS[1][k][2 * h:2 * h + 2]
            a(valu("v_pk_mul_f32", x0, x0, MLo[0], extra="op_sel_hi:[1,0]"))
            a(valu("v_pk_fma_f32", x0, x1, MLo[1], x0, extra="op_sel_hi:[1,0,1]"))
    for kp in range(3):
        dq = XS[1][kp]
        g0, g1 = XS[0][2 * kp], XS[0][2 * kp + 1]
        a(valu("v_cvt_pk_bf16_f32", dq[0], g0[0], g0[1]))
        a(valu("v_cvt_pk_bf16_f32", dq[1], g0[2], g0[3]))
        a(valu("v_cvt_pk_bf16_f32", dq[2], g1[0], g1[1]))
        a(valu("v_cvt_pk_bf16_f32", dq[3], g1[2], g1[3]))
        a(swap16(dq[0], dq[2]))
        a(swap16(dq[1], dq[3]))
        a(vstore(dq, t3, srdO, sT1, kp * 64, ""))
    if cfg.stamps:
        fin += stamp()
        a(wait(vm=0))
        fin += stamp()
        a(raw(f"s_memrealtime {sST}", "smem", [], sST.names()))
        a(wait(lgkm=0))
        a(raw(f"v_writelane_b32 {X1}, {sST[0]}, 63", "valu", sST[0].names() + X1.names(), X1.names()))
        a(salu("s_lshl_b32", sT2, S(2), 2))
        a(salu("s_add_u32", sT2, sT2, sW))
        a(salu("s_lshl_b32", sT2, sT2, 8))
        a(valu("v_lshlrev_b32", t1, 2, lane))
        a(vstore(X1, t1, srdW, sT2, 0, "", op="buffer_store_dword"))
    a(label("L_end"))
    a(raw("s_endpgm", "br"))
    fin, _ = finalize2(fin, hist=tailA[-30:], log=logs)

    for blk in (pro, blkA, blkB, tailA, tailB, fin):
        lastw = None
        for i in blk:
            if "scc" in i.rd:
                ok = lastw is not None and (lastw.txt.startswith("s_cmp") or lastw.txt.startswith("s_bitcmp")
                                            or i.txt.startswith("s_addc"))
                assert ok, (lastw, i)
            if "scc" in i.wr:
                lastw = i
    bad = 0
    bad += check_path("pro-A-B", pro, blkA, blkB, blkA)
    bad += check_path("pro-B-A", pro, proB, blkB, blkA, blkB)
    bad += check_path("A-tailB-fin", blkA, tailB, fin)
    bad += check_path("B-tailA-fin", blkB, tailA, fin)
    assert bad == 0
    info = dict(A=est16(blkA), B=est16(blkB), nA=len(blkA), nB=len(blkB), pro=est16(pro),
                tailA=est16(tailA), tailB=est16(tailB), fin=est16(fin))

    body = pro + blkA + blkB + proB + tailB + tailA + fin
    for o in slow_blocks:
        body += o
    hdr = f"""; Flash-style attention forward, one workgroup (4 waves, one per SIMD, 512 registers) per (batch, head).
; Softmax: running reference max per row (true max of the keys seen when it was last set); every 32-key unit is
; checked and falls back to a rescale with the true running max when the partial sum leaves the safe range.
; @launch grid=(256,1,1) block=(256,1,1) lds={LDS_BYTES}
.amdgcn_target "amdgcn-amd-amdhsa--gfx950"
.text
.globl {KN}
.p2align 8
.type {KN},@function
{KN}:
"""
    ftr = f"""
.section .rodata,"a"
.p2align 6
.amdhsa_kernel {KN}
  .amdhsa_next_free_vgpr 512
  .amdhsa_next_free_sgpr 64
  .amdhsa_accum_offset 256
  .amdhsa_group_segment_fixed_size 0
  .amdhsa_kernarg_size 48
  .amdhsa_user_sgpr_count 2
  .amdhsa_user_sgpr_kernarg_segment_ptr 1
  .amdhsa_system_sgpr_workgroup_id_x 1
  .amdhsa_float_denorm_mode_32 3
.end_amdhsa_kernel
"""
    txt = hdr + "\n".join(("" if i.kind == "label" else "    ") + i.txt for i in body) + ftr
    return txt, info, logs


if __name__ == "__main__":
    out = sys.argv[1]
    cfg = Cfg()
    for kv in sys.argv[2:]:
        k, v = kv.split("=")
        cur = getattr(cfg, k)
        if isinstance(cur, bool):
            v = v in ("1", "true", "True")
        elif isinstance(cur, (int, float)):
            v = type(cur)(float(v))
        setattr(cfg, k, v)
    txt, info, logs = gen(cfg)
    open(out, "w").write(txt)
    print(info)
    for l in logs:
        if cfg.verbose or not l.startswith("pad"):
            print("  ", l)
```

```python
import sys, struct, math
from asmlib import *

KN = "standalone__gqa_softmax__near_ridge_kernel"
SLOT = 12288
VRING = 6 * SLOT
MLBASE = 13 * SLOT
LDS_BYTES = 163840
CSCALE = 192 ** -0.5 * math.log2(math.e)


def f32bits(x):
    return struct.unpack("<I", struct.pack("<f", x))[0]


X = 4
O = {2: [V(4 * d, 4) for d in range(12)],
     3: [V(48 + 4 * d, 4) for d in range(12)],
     1: [A(216 + 4 * d, 4) for d in range(4)] + [V(96 + 4 * d, 4) for d in range(8)],
     0: [A(168 + 4 * d, 4) for d in range(12)],
     X: [A(120 + 4 * d, 4) for d in range(12)]}
S0 = {0: V(128, 8), 1: V(136, 8)}
SX = V(144, 8)
S1 = {"a": {2: V(152, 8), 3: V(160, 8)}, "b": {2: V(168, 8), 3: V(176, 8)}}
P0 = {"a": {0: V(184, 4), 1: V(188, 4)}, "b": {0: V(192, 4), 1: V(196, 4)}}
P1 = {2: V(200, 4), 3: V(204, 4)}
PX = V(208, 4)
NM = {t: V(212 + 4 * t, 4) for t in range(5)}
L = {t: V(232 + t) for t in range(5)}
vK = [V(237), V(238)]
vV = [V(239 + i) for i in range(4)]
voffK, voffV = V(243), V(244)
PS = [V(245), V(246)]
PSX = V(247)
TE = [V(248 + i) for i in range(6)]
X1 = V(255)
Q = {t: [A(24 * t + 4 * ks, 4) for ks in range(6)] for t in range(5)}
F = [A(232 + 4 * i, 4) for i in range(6)]

srdQ, srdK, srdV, srdO, srdW = S(12, 4), S(16, 4), S(20, 4), S(24, 4), S(28, 4)
sW, sTHR, sU, sG, sDMA, sD, sDo, sPOS = S(32), S(33), S(34), S(35), S(36), S(37), S(38), S(39)
sT0, sT1, sT2, sT3 = S(40), S(41), S(42), S(43)
sW3072, sWodd = S(44), S(45)
sC2 = S(46, 2)
sST = S(50, 2)
sSI = S(52)


class Cfg:
    ld = "nt"
    st = ""
    stamps = False
    rt = False
    thr = 2.0 ** 24
    barback = 9
    verbose = False
    dbg = False
    inner = 1
    dlate = 0
    pref = True
    align8 = False
    apad = 0
    D = 3
    lead = 5


def gen(cfg):
    logs = []

    def dma3(voff, srd, soff, base_sreg, const):
        return [[salu("s_add_u32", "m0", base_sreg, const + t * 896), dma(voff, srd, soff, t * 128, cfg.ld)]
                for t in range(3)]

    tctr = [0]

    def sm_half(Sr, Pr, kt, ps, first, earliest=0):
        out = []
        tt = []
        for e in range(4):
            t = TE[tctr[0] % len(TE)]
            tctr[0] += 1
            tt.append(t)
            i = trans("v_exp_f32", t, Sr[4 * kt + e])
            i.earliest = earliest
            out.append(i)
            if e == 1:
                out.append(valu("v_add_f32", ps, tt[0], tt[1]) if first else valu("v_add_f32", ps, ps, tt[0]))
                if not first:
                    out.append(valu("v_add_f32", ps, ps, tt[1]))
                out.append(valu("v_cvt_pk_bf16_f32", Pr[2 * kt], tt[0], tt[1]))
            if e == 3:
                out.append(valu("v_add_f32", ps, ps, tt[2]))
                out.append(valu("v_add_f32", ps, ps, tt[3]))
                out.append(valu("v_cvt_pk_bf16_f32", Pr[2 * kt + 1], tt[2], tt[3]))
        return out

    def sm_tile(Sr, Pr, ps, e0=0, e1=0):
        return sm_half(Sr, Pr, 0, ps, True, e0) + sm_half(Sr, Pr, 1, ps, False, e1)

    def allrows(op, x, t):
        return [valu("v_mov_b32", t, x), swap16(x, t), valu(op, x, x, t),
                valu("v_mov_b32", t, x), swap32(x, t), valu(op, x, x, t)]

    def rowmax8(Sr, m, t):
        o = [valu("v_max3_f32", m, Sr[0], Sr[1], Sr[2]), valu("v_max3_f32", t, Sr[3], Sr[4], Sr[5]),
             valu("v_max3_f32", m, m, Sr[6], Sr[7]), valu("v_max_f32", m, m, t)]
        return o + allrows("v_max_f32", m, t)

    def stamp():
        if not cfg.stamps:
            return []
        return [raw(f"{'s_memrealtime' if cfg.rt else 's_memtime'} {sST}", "smem", [], sST.names()), smov("m0", sSI),
                wait(lgkm=0),
                raw(f"v_writelane_b32 {X1}, {sST[0]}, m0", "valu", sST[0].names() + ["m0"] + X1.names(), X1.names()),
                salu("s_add_u32", sSI, sSI, 1)]

    def kfrag(i, buf):
        kt, ks = i // 6, i % 6
        return dsr128(buf, vK[ks % 2], kt * 6144 + (ks // 2) * 1024)

    def vfrag(db, buf):
        a_ = vV[db % 4]
        return [dsrtr(buf[0:2], a_, (db // 4) * 1024), dsrtr(buf[2:4], a_, 6144 + (db // 4) * 1024)]

    ENTRY_PEND = [set(F[0].names()), set(F[1].names())]

    pro = []
    a = pro.append
    T = [V(32 + i) for i in range(32)]
    vL = T[0]
    a(scmp("s_cmp_ge_u32", S(2), 256))
    a(branch("s_cbranch_scc1", "L_end", ["scc"]))
    a(raw("s_load_dwordx4 s[4:7], s[0:1], 0", "smem", [], ["s4", "s5", "s6", "s7"]))
    a(raw("s_load_dwordx4 s[8:11], s[0:1], 16", "smem", [], ["s8", "s9", "s10", "s11"]))
    if cfg.stamps:
        a(raw(f"s_load_dwordx2 s[28:29], s[0:1], {32 if cfg.dbg else 40}", "smem", [], ["s28", "s29"]))
        a(smov(sSI, 0))
        a(valu("v_mov_b32", X1, 0))
    vmq = []
    if cfg.pref:
        a(raw("s_getpc_b64 s[48:49]", "salu", [], ["s48", "s49"]))
        a(label("L_pc"))
        a(valu("v_lshlrev_b32", T[1], 7, V(0)))
        a(raw(f"v_min_u32 {T[1]}, L_end-L_pc, {T[1]}", "valu", T[1].names(), T[1].names()))
        a(raw(f"global_load_dword {V(254)}, {T[1]}, s[48:49]", "dma", T[1].names() + ["s48", "s49"], []))
        vmq.append("code")
    a(valu("v_lshrrev_b32", T[2], 6, V(0)))
    a(valu("v_and_b32", vL, 63, V(0)))
    a(valu("v_readfirstlane_b32", sW, T[2]))
    a(salu("s_mul_i32", sT0, S(2), 110592, scc=False))
    a(salu("s_mul_i32", sT1, S(2), 196608, scc=False))
    r8, j8, rh, E, r384 = T[3], T[4], T[5], T[6], T[7]
    a(valu("v_lshrrev_b32", r8, 3, vL))
    a(valu("v_and_b32", j8, 7, vL))
    a(valu("v_lshrrev_b32", rh, 4, vL))
    a(valu("v_mul_u32_u24", r384, 384, r8))
    a(valu("v_xor_b32", E, j8, rh))
    a(valu("v_lshl_add_u32", E, E, 4, r384))
    a(salu("s_mul_i32", sW3072, sW, 3072, scc=False))
    a(salu("s_and_b32", sWodd, sW, 1))
    a(salu("s_lshl_b32", sT2, sWodd, 6))
    a(valu("v_xor_b32", voffK, sT2, E))
    a(valu("v_add_u32", voffK, sW3072, voffK))
    Eo = T[8]
    a(valu("v_xor_b32", Eo, 64, E))
    a(valu("v_lshlrev_b32", T[9], 1, rh))
    a(valu("v_xor_b32", T[9], T[9], j8))
    a(valu("v_lshl_add_u32", voffV, T[9], 4, r384))
    a(valu("v_add_u32", voffV, sW3072, voffV))
    a(salu("s_mul_i32", sT3, sW, 24576, scc=False))
    a(salu("s_lshr_b32", sT2, sW, 1))
    a(salu("s_mul_i32", sT2, sT2, 6144, scc=False))
    a(wait(lgkm=0))
    for srd, lo, off, sz in ((srdK, 6, sT1, 196608), (srdQ, 4, sT0, 110592), (srdV, 8, sT1, 196608),
                             (srdO, 10, sT0, 110592)):
        a(salu("s_add_u32", srd[0], S(lo), off))
        a(salu("s_addc_u32", srd[1], S(lo + 1), 0, rd_scc=True))
        a(smov(srd[2], sz))
        a(smov(srd[3], 0x20000))
    if cfg.stamps:
        a(smov(srdW[2], 256 if cfg.dbg else 0x10000000))
        a(smov(srdW[3], 0x20000))
        a(raw(f"s_memrealtime {sST}", "smem", [], sST.names()))
        a(wait(lgkm=0))
        a(raw(f"v_writelane_b32 {X1}, {sST[0]}, 62", "valu", sST[0].names() + X1.names(), X1.names()))
    pro += stamp()

    def issue(pairs, lab, setg):
        for k, (m, d) in enumerate(pairs):
            a(m)
            if k == 0:
                a(setg)
            a(d)
            vmq.append(lab)

    def vmwait(*labs):
        last = max(i for i, l in enumerate(vmq) if l in labs)
        return len(vmq) - 1 - last

    def ldK(u):
        issue(dma3(voffK, srdK, sG, sW3072, (u % 6) * SLOT), f"K{u}", smov(sG, u * SLOT))

    def ldV(u):
        issue(dma3(voffV, srdV, sG, sW3072, VRING + ((u + 1) % 6) * SLOT), f"V{u}", smov(sG, u * SLOT))

    QORD = [X, 0, 1, 2, 3]
    D = cfg.D

    def ldQ(t, i):
        setg = salu("s_add_u32", sG, sT3, (2 * t + i) * 3072)
        issue(dma3(Eo if i else E, srdQ, sG, sW3072, (2 + t + 6 * i) * SLOT), f"Q{t}", setg)

    def ldX():
        issue(dma3(voffK, srdQ, sG, sW3072, 12 * SLOT), f"Q{X}", smov(sG, 256 * 384))

    dq = [(lambda: ldK(0), None), (ldX, None)]
    for t in range(4):
        dq += [(lambda t=t: ldQ(t, 0), None), (lambda t=t: ldQ(t, 1), None)]
    for g in range(D):
        need = g - 1 if 1 <= g <= 4 else None
        dq += [(lambda g=g: ldK(g + 1), need), (lambda g=g: ldV(g), need)]
    consumed = set()

    def pump(k):
        for _ in range(k):
            if dq:
                fn, need = dq[0]
                assert need is None or need in consumed, need
                dq.pop(0)
                fn()

    pump(4)
    a(smov(sC2[0], f32bits(CSCALE)))
    a(smov(sC2[1], f32bits(CSCALE)))
    a(smov(sTHR, f32bits(cfg.thr)))
    a(smov(sPOS, SLOT))
    a(smov(sD, SLOT))
    a(smov(sU, 0))
    a(salu("s_add_u32", sDMA, sW3072, ((D + 1) % 6) * SLOT))
    r16, cg, t1, t2 = T[10], T[11], T[12], T[13]
    a(valu("v_and_b32", r16, 15, vL))
    a(valu("v_lshrrev_b32", cg, 4, vL))
    a(valu("v_and_b32", t1, 7, r16))
    a(valu("v_lshlrev_b32", t1, 7, t1))
    a(valu("v_lshrrev_b32", t2, 1, r16))
    a(valu("v_xor_b32", t2, t2, cg))
    a(valu("v_lshl_add_u32", t1, t2, 4, t1))
    a(valu("v_lshrrev_b32", t2, 3, r16))
    a(valu("v_mul_u32_u24", vK[0], 3072, t2))
    a(valu("v_add_u32", vK[0], vK[0], t1))
    a(valu("v_xor_b32", vK[1], 64, vK[0]))
    vQs = [T[14], T[15], T[16], T[17]]
    a(valu("v_mul_u32_u24", vQs[0], 6 * SLOT, t2))
    a(valu("v_add_u32", vQs[0], vQs[0], t1))
    a(salu("s_add_u32", sT0, sW3072, 2 * SLOT))
    a(valu("v_add_u32", vQs[0], sT0, vQs[0]))
    a(valu("v_xor_b32", vQs[1], 64, vQs[0]))
    a(salu("s_add_u32", sT0, sT2, 12 * SLOT))
    a(valu("v_add_u32", vQs[2], sT0, vK[0]))
    a(valu("v_add_u32", vQs[3], sT0, vK[1]))
    a(valu("v_bfe_u32", t1, vL, 2, 3))
    a(valu("v_lshlrev_b32", t2, 7, t1))
    a(valu("v_lshrrev_b32", t1, 1, t1))
    a(valu("v_lshl_add_u32", t2, t1, 5, t2))
    a(valu("v_and_b32", t1, 3, vL))
    a(valu("v_lshl_add_u32", t2, t1, 3, t2))
    a(valu("v_lshrrev_b32", t1, 5, vL))
    a(valu("v_mul_u32_u24", t1, 3072, t1))
    a(valu("v_add_u32", t2, t2, t1))
    a(valu("v_add_u32", vV[0], VRING + SLOT, t2))
    for i in range(1, 4):
        a(valu("v_xor_b32", vV[i], i << 5, vV[0]))
    Z = V(TE[0].i, 4)
    for i in range(4):
        a(valu("v_mov_b32", Z[i], 0))
    for t in range(5):
        a(valu("v_mov_b32", L[t], 0))
    for g in [V(64 + 16 * i, 16) for i in range(4)] + [A(120 + 16 * i, 16) for i in range(7)]:
        a(mfma32(g, Z, Z, 0))
    KF = ([S1["a"][2][0:4], S1["a"][2][4:8], S1["a"][3][0:4], S1["a"][3][4:8], P0["b"][0], P0["b"][1], P1[2], P1[3]]
          + F[2:6])
    pump(cfg.lead - 4)
    a(wait(vm=vmwait("K0", f"Q{X}")))
    a(barrier())
    pro += stamp()
    RAW = [V(4 * i, 4) for i in range(6)]
    UT = [V(24 + 2 * i, 2) for i in range(4)]
    Sdst = {0: S0[0], 1: S0[1], X: SX, 2: S1["b"][2], 3: S1["b"][3]}
    for t in QORD:
        if t != X:
            pro.extend(stamp())
            a(wait(vm=vmwait(f"Q{t}")))
            pro.extend(stamp())
        for ks in range(6):
            if t == X:
                a(dsr128(RAW[ks], vQs[2 + ks % 2], (ks // 2) * 1024))
            else:
                a(dsr128(RAW[ks], vQs[ks % 2], t * SLOT + (ks // 2) * 1024))
        if t == X:
            for i in range(12):
                a(kfrag(i, KF[i]))
            for i in range(2):
                a(valu("v_add_u32", vK[i], sPOS, vK[i]))
        pump(1)
        for ks in range(6):
            for r in range(4):
                u2 = UT[r]
                a(valu("v_lshlrev_b32", u2[0], 16, RAW[ks][r]))
                a(valu("v_and_b32", u2[1], 0xFFFF0000, RAW[ks][r]))
            for r in range(4):
                a(valu("v_pk_mul_f32", UT[r], UT[r], sC2))
            for r in range(4):
                a(valu("v_cvt_pk_bf16_f32", UT[r][0], UT[r][0], UT[r][1]))
            for r in range(4):
                a(valu("v_accvgpr_write_b32", Q[t][ks][r], UT[r][0]))
            if ks >= 1:
                for kt in range(2):
                    Dd = Sdst[t][4 * kt:4 * kt + 4]
                    a(mfma16(Dd, KF[6 * kt + ks - 1], Q[t][ks - 1], 0 if ks == 1 else Dd))
        consumed.add(t)
        for kt in range(2):
            Dd = Sdst[t][4 * kt:4 * kt + 4]
            a(mfma16(Dd, KF[6 * kt + 5], Q[t][5], Dd))
        pump(1)
        if t == QORD[-1]:
            for i in range(4):
                a(valu("v_mov_b32", Z[i], 0))
            for g in [V(16 * i, 16) for i in range(2)]:
                a(mfma32(g, Z, Z, 0))
        m_, tt_ = TE[4], TE[5]
        pro += rowmax8(Sdst[t], m_, tt_)
        for i in range(8):
            a(valu("v_sub_f32", Sdst[t][i], Sdst[t][i], m_))
        for i in range(4):
            a(valu("v_sub_f32", NM[t][i], 0, m_))
        if t in (0, 1):
            pro += sm_tile(S0[t], P0["a"][t], L[t])
        if t == X:
            pro += sm_half(SX, PX, 0, PSX, True)
    pro += stamp()
    a(wait(vm=vmwait("K1", "V0")))
    a(barrier())
    pro += stamp()
    a(kfrag(0, F[0]))
    a(kfrag(1, F[1]))
    pump(100)
    assert vmwait("K1", "V0") == 6 * (D - 1)
    for g in [V(32 + 16 * i, 16) for i in range(2)]:
        a(mfma32(g, Z, Z, 0))
    a(valu("v_add_u32", voffK, SLOT, voffK))
    a(smov(sG, D * SLOT))
    a(scmp("s_cmp_lg_u32", sWodd, 0))
    a(branch("s_cbranch_scc1", "L_enterB", ["scc"]))
    pro, pend = finalize2(pro, log=logs)
    assert pend[-2:] == ENTRY_PEND, pend
    proB = [label("L_enterB")]
    for t in (2, 3):
        for i in range(8):
            proB.append(valu("v_mov_b32", S1["a"][t][i], S1["b"][t][i]))
    for t in (0, 1):
        for i in range(4):
            proB.append(valu("v_mov_b32", P0["b"][t][i], P0["a"][t][i]))
    proB.append(branch("s_branch", "L_B"))
    proB, _ = finalize2(proB, hist=pro[-30:], log=logs)

    slow_blocks = []

    def slow(name, ret, items):
        o = [label(name), nop(16)]
        for t, Sr, Pr, ps, Sn in items:
            d, f, tmp = TE[0], TE[1], TE[2]
            o += rowmax8(Sr, d, tmp)
            o.append(valu("v_max_f32", d, 0, d))
            o.append(valu("v_sub_f32", f, 0, d))
            o.append(trans("v_exp_f32", f, f))
            for i in range(4):
                o.append(valu("v_sub_f32", NM[t][i], NM[t][i], d))
            for i in range(8):
                o.append(valu("v_sub_f32", Sr[i], Sr[i], d))
            if Sn is not None:
                for i in range(8):
                    o.append(valu("v_sub_f32", Sn[i], Sn[i], d))
            o.append(valu("v_mul_f32", L[t], f, L[t]))
            for g in O[t]:
                for i in range(4):
                    r = g[i]
                    if r.f == "v":
                        o.append(valu("v_mul_f32", r, f, r))
                    else:
                        tq = TE[2 + i % 2]
                        o.append(valu("v_accvgpr_read_b32", tq, r))
                        o.append(valu("v_mul_f32", tq, f, tq))
                        o.append(valu("v_accvgpr_write_b32", r, tq))
            o += sm_tile(Sr, Pr, ps)
        o.append(nop(4))
        o.append(branch("s_branch", ret))
        o, _ = finalize2(o)
        slow_blocks.append(o)

    def chk(pss):
        t = TE[tctr[0] % len(TE)]
        tctr[0] += 1
        o = [valu("v_max3_f32", t, *pss) if len(pss) == 3 else valu("v_max_f32", t, *pss)]
        o.append(valu("v_cmp_lt_f32", "vcc", sTHR, t))
        return o

    def block(B):
        isA = B == "A"
        sw, sr = ("a", "b") if isA else ("b", "a")
        pr, pw = ("a", "b") if isA else ("b", "a")
        Sw = {0: S0[0], 1: S0[1], 2: S1[sw][2], 3: S1[sw][3], X: SX}
        Pr = {0: P0[pr][0], 1: P0[pr][1], 2: P1[2], 3: P1[3], X: PX}
        qt = [0, 1, 2, 3] + ([] if isA else [X])
        pt = [0, 1, 2, 3] + ([X] if isA else [])
        mf, kpos, kend, last = [], {}, {}, {}
        for i in range(12):
            kt, ks = i // 6, i % 6
            kpos[i] = len(mf)
            for t in qt:
                Dd = Sw[t][4 * kt:4 * kt + 4]
                last[(t, kt)] = len(mf)
                mf.append(mfma16(Dd, F[i % 3], Q[t][ks], NM[t] if ks == 0 else Dd))
            kend[i] = len(mf)
        nq = len(mf)
        vb = lambda db: [F[3], F[4], F[5], F[2]][db % 4]
        vpos, vend = {}, {}
        for db in range(12):
            vpos[db] = len(mf)
            for t in pt:
                mf.append(mfma16(O[t][db], vb(db), Pr[t], O[t][db]))
            vend[db] = len(mf)
        n = len(mf)
        sc = Sched(mf)
        gb = n - cfg.barback
        for i in range(1, 12):
            sc.wres[kpos[i]] = True
        for db in range(12):
            if vpos[db] < gb:
                sc.wres[vpos[db]] = True
        assert not sc.wres[gb]
        sc.wres[n] = True
        sc.put_vec_from(1, [kfrag(2, F[2])])
        for i in range(3, 12):
            sc.put_vec_from(kend[i - 3], [kfrag(i, F[i % 3])])
        for db in range(3):
            sc.put_vec_from(kpos[9 + db] + 1, vfrag(db, vb(db)))
        sc.put_vec_from(nq, vfrag(3, vb(3)))
        gl = 0
        for db in range(4, 12):
            gl = sc.put_vec_from(vend[db - 4], vfrag(db, vb(db)))
        assert gl < gb
        if cfg.inner == 1:
            sc.put_sc(gb, *stamp())
        sc.put_sc(gb, wait(vm=6 * (D - 1), lgkm=0), barrier())
        if cfg.inner == 1:
            sc.put_sc(gb, *stamp())
        if cfg.inner == 2 and cfg.stamps:
            st_ = stamp()
            sc.put_sc(gb, st_[1], st_[4], st_[3], st_[0])
        sc.put_vec_from(gb, [kfrag(0, F[0]), kfrag(1, F[1])])
        dmask = sum(1 << u for u in range(32) if (u + D + 1) % 6 == 5)
        g = sc.put_sc_from(1, [scmp("s_bitcmp1_b32", 0x10410, sU),
                               salu("s_cselect_b32", sD, (-5 * SLOT) & 0xFFFFFFFF, sPOS, scc=False, rd_scc=True),
                               scmp("s_bitcmp1_b32", dmask, sU),
                               salu("s_cselect_b32", sDo, (-5 * SLOT) & 0xFFFFFFFF, sPOS, scc=False, rd_scc=True)])
        dm = dma3(voffK, srdK, sG, sDMA, 0) + dma3(voffV, srdV, sG, sDMA, VRING)
        d0, d1 = (nq + 4, gb - 6) if isA else (g + 2, nq - 16)
        for k, (m_, d_) in enumerate(dm):
            g = d0 + (d1 - d0) * k // 5
            while not (sc.sc_free(g) and sc.free(g + 1) >= 2):
                g += 1
            sc.put_sc(g, m_)
            sc.put_vec(g + 1, d_)
        assert g + 1 < gb
        g = sc.put_sc_from(g + 2, [salu("s_add_u32", sDMA, sDMA, sDo), salu("s_add_u32", sG, sG, SLOT),
                                   scmp("s_cmp_ge_u32", sU, 15 - D),
                                   salu("s_cselect_b32", sDMA, LDS_BYTES, sDMA, scc=False, rd_scc=True),
                                   salu("s_add_u32", sU, sU, 1)], gmax=n - 4)
        gc1 = nq + 2
        assert sc.sc_free(gc1)
        sc.put_sc(gc1, branch("s_cbranch_vccnz", f"L_slow1{B}", ["vcc"]), label(f"L_ret1{B}"))
        gc0 = n - 2
        assert sc.sc_free(gc0) and gc0 >= vpos[11] + 2
        sc.put_sc(gc0, branch("s_cbranch_vccnz", f"L_slow0{B}", ["vcc"]), label(f"L_ret0{B}"))
        sc.put_vec(gc0, valu("v_add_f32", L[0], L[0], PS[0]), valu("v_add_f32", L[1], L[1], PS[1]))
        assert sc.sc_free(n - 1)
        sc.put_sc(n - 1, scmp("s_cmp_eq_u32", sU, 15))
        sc.tail[n].append(branch("s_cbranch_scc1", "L_tailB" if isA else "L_tailA", ["scc"]))
        if not isA:
            sc.tail[n].append(branch("s_branch", "L_A"))
        st1 = sm_tile(S1[sr][2], P1[2], PS[0]) + sm_tile(S1[sr][3], P1[3], PS[1])
        if isA:
            st1 += sm_half(SX, PX, 1, PSX, False) + chk([PS[0], PS[1], PSX])
        else:
            st1 += chk([PS[0], PS[1]]) + sm_half(SX, PX, 0, PSX, True, last[(X, 0)] + 5)
        e1, x1 = sc.fill(st1, 1, gc1 - 1, name=f"{B}.st1")
        items = [(t, S1[sr][t], P1[t], PS[t - 2], S1[sw][t]) for t in (2, 3)]
        if isA:
            items.append((X, SX, PX, PSX, None))
        slow(f"L_slow1{B}", f"L_ret1{B}", items)
        st0 = [valu("v_add_f32", L[2], L[2], PS[0]), valu("v_add_f32", L[3], L[3], PS[1])]
        if isA:
            st0.append(valu("v_add_f32", L[X], L[X], PSX))
        st0 += [valu("v_add_u32", x, sD, x) for x in vK]
        st0 += sm_tile(S0[0], P0[pw][0], PS[0]) + sm_tile(S0[1], P0[pw][1], PS[1]) + chk([PS[0], PS[1]])
        adv = [valu("v_add_u32", x, sD, x) for x in vV]
        sc.put_vec_from(n - 1, adv[0:2])
        for i in adv[2:4]:
            i.earliest = gl + 1
        e0, x0 = sc.fill(st0 + adv[2:4], gc1, gc0 - 1, name=f"{B}.st0")
        slow(f"L_slow0{B}", f"L_ret0{B}", [(t, S0[t], P0[pw][t], PS[t], None) for t in (0, 1)])
        logs.append(f"block {B}: st1 ends gap {e1}/{gc1 - 1} (+{x1} overfull), st0 ends {e0}/{gc0 - 1} (+{x0})")
        seq = [label(f"L_{B}")] + sc.emit()
        k = max(i for i, x in enumerate(seq) if x.kind in MFMA_KINDS)
        seq.insert(k + 1, wait(lgkm=1))
        out, pend = finalize2(seq, pend=ENTRY_PEND[1:], log=logs)
        assert pend[-1:] == ENTRY_PEND[1:], pend
        return out

    blkA = block("A")
    blkB = block("B")
    pro[-2:-2] = [wait(lgkm=1)]

    VF = [A(4 * db, 4) for db in range(12)]

    def tail(B):
        isA = B == "A"
        sr = "b" if isA else "a"
        pr = "a" if isA else "b"
        mf = []
        for db in range(12):
            for t in (0, 1):
                mf.append(mfma16(O[t][db], VF[db], P0[pr][t], O[t][db]))
        sc = Sched(mf, cap=3)
        n = len(mf)
        pre = []
        for db in range(4):
            pre += vfrag(db, VF[db])
        for db in range(4, 12):
            sc.put_vec_from(2 * (db - 4) + 1, vfrag(db, VF[db]))
        st = []
        if isA:
            st += sm_half(SX, PX, 1, PSX, False)
        st += sm_tile(S1[sr][2], P1[2], PS[0]) + sm_tile(S1[sr][3], P1[3], PS[1])
        st += chk([PS[0], PS[1], PSX] if isA else [PS[0], PS[1]])
        pre += st[:10]
        sc.cap[n] = 1000
        sc.fill(st[10:], 1, n, name="tail")
        seq = [label(f"L_tail{B}")] + stamp() + pre + sc.emit()
        seq += [branch("s_cbranch_vccnz", f"L_slowT{B}", ["vcc"]), label(f"L_retT{B}"),
                valu("v_add_f32", L[2], L[2], PS[0]), valu("v_add_f32", L[3], L[3], PS[1])]
        items = [(t, S1[sr][t], P1[t], PS[t - 2], None) for t in (2, 3)]
        if isA:
            seq.append(valu("v_add_f32", L[X], L[X], PSX))
            items.append((X, SX, PX, PSX, None))
            for db in range(12):
                seq.append(mfma16(O[X][db], VF[db], PX, O[X][db]))
        else:
            seq.append(branch("s_branch", "L_fin"))
        slow(f"L_slowT{B}", f"L_retT{B}", items)
        out, pend = finalize2(seq, pend=ENTRY_PEND[1:], log=logs)
        assert not pend, pend
        return out

    tailB = tail("B")
    tailA = tail("A")

    fin = [label("L_fin")] + stamp()
    a = fin.append
    E_ = [V(128 + i) for i in range(72)]
    lane, q16, gq, t1, t2, t3 = E_[0], E_[1], E_[2], E_[3], E_[4], E_[5]
    INV = {t: V(E_[6].i + 2 * t, 2) for t in range(4)}
    wa = [E_[14 + i] for i in range(4)]
    ra = [E_[18 + i] for i in range(3)]
    so, xw, xr, ma = E_[21], E_[22], E_[23], E_[24]
    ml = V(E_[26].i, 2)
    MLo = [V(E_[28].i, 2), V(E_[30].i, 2)]
    TMP = [V(E_[32].i + 4 * i, 4) for i in range(4)]
    DT = [V(E_[48].i + 4 * i, 4) for i in range(6)]
    pre = []
    b = pre.append
    b(valu("v_mbcnt_lo_u32_b32", lane, -1, 0))
    b(valu("v_mbcnt_hi_u32_b32", lane, -1, lane))

    def inv_of(t):
        return allrows("v_add_f32", L[t], t1) + [trans("v_rcp_f32", INV[t][0], L[t])]

    pre += inv_of(0)
    b(valu("v_and_b32", q16, 15, lane))
    b(valu("v_lshrrev_b32", gq, 4, lane))
    b(salu("s_mul_i32", sT0, sW, 24576, scc=False))
    b(valu("v_mul_u32_u24", t2, 384, q16))
    b(valu("v_and_b32", t3, 7, q16))
    b(valu("v_lshrrev_b32", t1, 1, gq))
    b(valu("v_xor_b32", t3, t3, t1))
    b(valu("v_lshl_add_u32", t2, t3, 4, t2))
    b(valu("v_and_b32", t3, 1, gq))
    b(valu("v_lshl_add_u32", t2, t3, 3, t2))
    b(valu("v_add_u32", wa[0], sT0, t2))
    for i in range(1, 4):
        b(valu("v_xor_b32", wa[i], i << 5, wa[0]))

    def epi_tile(t):
        o = []
        for db in range(12):
            g = O[t][db]
            src = g
            if g.f == "a":
                src = TMP[db % 4]
                for i in range(4):
                    o.append(valu("v_accvgpr_read_b32", src[i], g[i]))
            o.append(valu("v_pk_mul_f32", src[0:2], src[0:2], INV[t], extra="op_sel_hi:[1,0]"))
            o.append(valu("v_pk_mul_f32", src[2:4], src[2:4], INV[t], extra="op_sel_hi:[1,0]"))
            o.append(valu("v_cvt_pk_bf16_f32", src[0], src[0], src[1]))
            o.append(valu("v_cvt_pk_bf16_f32", src[1], src[2], src[3]))
            o.append(dsw64(wa[db % 4], src[0:2], t * 6144 + (db // 4) * 128))
        return o

    def readback(t, dst):
        return [dsr128(dst[i], ra[i % 3], t * 6144 + (i // 3) * 3072) for i in range(6)]

    def stores(t, dst):
        o = []
        for i in range(6):
            off = t * 6144 + i * 1024
            o.append(smov(sT3, off & ~4095))
            o.append(vstore(dst[i], so, srdO, sT3, off & 4095, cfg.st))
        return o

    addr2 = []
    c = addr2.append
    for i in range(3):
        c(valu("v_add_u32", t1, 64 * i, lane))
        c(valu("v_mul_u32_u24", t2, 2731, t1))
        c(valu("v_bfe_u32", t2, t2, 16, 3))
        c(valu("v_xor_b32", t1, t1, t2))
        c(valu("v_lshl_add_u32", ra[i], t1, 4, sT0))
    c(valu("v_lshl_add_u32", so, lane, 4, sT0))
    mf = []
    for t in (2, 3):
        for db in range(12):
            mf.append(mfma16(O[t][db], VF[db], P1[t], O[t][db]))
    st = pre + epi_tile(0) + addr2 + readback(0, DT) + inv_of(1)
    k = 0
    for m_ in mf:
        fin.append(m_)
        fin += st[k:k + 3]
        k += 3
    fin += st[k:]
    e1 = epi_tile(1)
    fin += e1[:20]
    fin += stores(0, DT)
    fin += e1[20:]
    D1 = [V(96 + 4 * i, 4) for i in range(6)]
    fin += readback(1, D1)
    a(salu("s_lshr_b32", sT1, sW, 1))
    a(salu("s_mul_i32", sT1, sT1, 3 * SLOT, scc=False))
    a(salu("s_add_u32", sT1, sT1, 8 * SLOT))
    a(salu("s_mul_i32", sT2, sWodd, SLOT, scc=False))
    a(salu("s_add_u32", sT2, sT2, sT1))
    a(valu("v_lshl_add_u32", xw, lane, 4, sT2))
    a(salu("s_mul_i32", sT2, sWodd, 6144, scc=False))
    a(salu("s_add_u32", sT2, sT2, sT1))
    a(valu("v_lshl_add_u32", xr, lane, 4, sT2))
    for db in range(12):
        a(dsw128(xw, O[X][db], db * 1024))
    fin += allrows("v_add_f32", L[X], t1)
    a(valu("v_mov_b32", ml[0], NM[X][0]))
    a(valu("v_mov_b32", ml[1], L[X]))
    a(salu("s_lshr_b32", sT1, sW, 1))
    a(salu("s_lshl_b32", sT1, sT1, 8))
    a(salu("s_add_u32", sT1, sT1, MLBASE))
    a(valu("v_lshl_add_u32", ma, q16, 3, sT1))
    a(salu("s_lshl_b32", sT2, sWodd, 7))
    a(valu("v_add_u32", t1, sT2, ma))
    a(dsw64(t1, ml))
    fin += inv_of(2)
    fin += stores(1, D1)
    fin += epi_tile(2)
    D2 = [V(4 * i, 4) for i in range(6)]
    fin += readback(2, D2)
    fin += inv_of(3)
    e3 = epi_tile(3)
    fin += e3[:15]
    fin += stores(2, D2)
    fin += e3[15:]
    D3 = [V(48 + 4 * i, 4) for i in range(6)]
    fin += readback(3, D3)
    a(wait(lgkm=6))
    a(barrier())
    XS = [[V(24 + 4 * k, 4) for k in range(6)], [V(72 + 4 * k, 4) for k in range(6)]]
    for s_ in range(2):
        a(dsr64(MLo[s_], ma, s_ * 128))
    for s_ in range(2):
        for k in range(6):
            a(dsr128(XS[s_][k], xr, s_ * SLOT + k * 1024))
    fin += stores(3, D3)
    a(valu("v_min_f32", t1, MLo[0][0], MLo[1][0]))
    for s_ in range(2):
        a(valu("v_sub_f32", MLo[s_][0], t1, MLo[s_][0]))
    for s_ in range(2):
        a(trans("v_exp_f32", MLo[s_][0], MLo[s_][0]))
    a(valu("v_mul_u32_u24", t3, 384, q16))
    a(valu("v_mul_f32", t2, MLo[0][0], MLo[0][1]))
    a(valu("v_fma_f32", t2, MLo[1][0], MLo[1][1], t2))
    a(trans("v_rcp_f32", t2, t2))
    a(valu("v_and_b32", t1, 1, gq))
    a(valu("v_lshl_add_u32", t3, t1, 5, t3))
    a(valu("v_lshrrev_b32", t1, 1, gq))
    a(valu("v_lshl_add_u32", t3, t1, 4, t3))
    for s_ in range(2):
        a(valu("v_mul_f32", MLo[s_][0], MLo[s_][0], t2))
    a(salu("s_lshr_b32", sT1, sW, 1))
    a(salu("s_mul_i32", sT1, sT1, 6144, scc=False))
    a(salu("s_mul_i32", sT2, sWodd, 192, scc=False))
    a(salu("s_add_u32", sT1, sT1, sT2))
    a(salu("s_add_u32", sT1, sT1, 256 * 384))
    for k in range(6):
        for h in range(2):
            x0, x1 = XS[0][k][2 * h:2 * h + 2], XS[1][k][2 * h:2 * h + 2]
            a(valu("v_pk_mul_f32", x0, x0, MLo[0], extra="op_sel_hi:[1,0]"))
            a(valu("v_pk_fma_f32", x0, x1, MLo[1], x0, extra="op_sel_hi:[1,0,1]"))
    for kp in range(3):
        dq = XS[1][kp]
        g0, g1 = XS[0][2 * kp], XS[0][2 * kp + 1]
        a(valu("v_cvt_pk_bf16_f32", dq[0], g0[0], g0[1]))
        a(valu("v_cvt_pk_bf16_f32", dq[1], g0[2], g0[3]))
        a(valu("v_cvt_pk_bf16_f32", dq[2], g1[0], g1[1]))
        a(valu("v_cvt_pk_bf16_f32", dq[3], g1[2], g1[3]))
        a(swap16(dq[0], dq[2]))
        a(swap16(dq[1], dq[3]))
        a(vstore(dq, t3, srdO, sT1, kp * 64, ""))
    if cfg.stamps:
        fin += stamp()
        a(wait(vm=0))
        fin += stamp()
        a(raw(f"s_memrealtime {sST}", "smem", [], sST.names()))
        a(wait(lgkm=0))
        a(raw(f"v_writelane_b32 {X1}, {sST[0]}, 63", "valu", sST[0].names() + X1.names(), X1.names()))
        a(salu("s_lshl_b32", sT2, S(2), 2))
        a(salu("s_add_u32", sT2, sT2, sW))
        a(salu("s_lshl_b32", sT2, sT2, 8))
        a(valu("v_lshlrev_b32", t1, 2, lane))
        if cfg.dbg:
            a(raw(f"v_readlane_b32 {sT0}, {X1}, 62", "valu", X1.names(), sT0.names()))
            a(valu("v_add_u32", t2, 8, t1))
            a(raw(f"ds_bpermute_b32 {t3}, {t2}, {X1}", "dsr", t2.names() + X1.names(), t3.names()))
            a(valu("v_subrev_u32", t3, sT0, t3))
            a(raw(f"v_writelane_b32 {t3}, {sST[0]}, 14", "valu", sST[0].names() + t3.names(), t3.names()))
            a(salu("s_not_b32", sT0, sT0))
            a(raw(f"v_writelane_b32 {t3}, {sT0}, 15", "valu", sT0.names() + t3.names(), t3.names()))
            a(raw("s_mov_b64 exec, 0xffff", "salu", [], ["exec"]))
            a(vstore(t3, t1, srdW, 0, 0, "", op="buffer_atomic_umax"))
        else:
            a(vstore(X1, t1, srdW, sT2, 0, "", op="buffer_store_dword"))
    a(label("L_end"))
    a(raw("s_endpgm", "br"))
    fin, _ = finalize2(fin, hist=tailA[-30:], log=logs)

    for blk in (pro, blkA, blkB, tailA, tailB, fin):
        lastw = None
        for i in blk:
            if "scc" in i.rd:
                ok = lastw is not None and (lastw.txt.startswith("s_cmp") or lastw.txt.startswith("s_bitcmp")
                                            or i.txt.startswith("s_addc"))
                assert ok, (lastw, i)
            if "scc" in i.wr:
                lastw = i
    bad = 0
    bad += check_path("pro-A-B", pro, blkA, blkB, blkA)
    bad += check_path("pro-B-A", pro, proB, blkB, blkA, blkB)
    bad += check_path("A-tailB-fin", blkA, tailB, fin)
    bad += check_path("B-tailA-fin", blkB, tailA, fin)
    assert bad == 0
    info = dict(A=est16(blkA), B=est16(blkB), nA=len(blkA), nB=len(blkB), pro=est16(pro),
                tailA=est16(tailA), tailB=est16(tailB), fin=est16(fin))

    body = pro + blkA + blkB + proB + tailB + tailA + fin
    for o in slow_blocks:
        body += o
    hdr = f"""; Flash-style attention forward, one workgroup (4 waves, one per SIMD, 512 registers) per (batch, head).
; Softmax: running reference max per row (true max of the keys seen when it was last set); every 32-key unit is
; checked and falls back to a rescale with the true running max when the partial sum leaves the safe range.
; @launch grid=(256,1,1) block=(256,1,1) lds={LDS_BYTES}
.amdgcn_target "amdgcn-amd-amdhsa--gfx950"
.text
.globl {KN}
.p2align 8
.type {KN},@function
{KN}:
"""
    ftr = f"""
.section .rodata,"a"
.p2align 6
.amdhsa_kernel {KN}
  .amdhsa_next_free_vgpr 512
  .amdhsa_next_free_sgpr 64
  .amdhsa_accum_offset 256
  .amdhsa_group_segment_fixed_size 0
  .amdhsa_kernarg_size 48
  .amdhsa_user_sgpr_count 2
  .amdhsa_user_sgpr_kernarg_segment_ptr 1
  .amdhsa_system_sgpr_workgroup_id_x 1
  .amdhsa_float_denorm_mode_32 3
.end_amdhsa_kernel
"""
    txt = hdr + "\n".join(("" if i.kind == "label" else "    ") + i.txt for i in body) + ftr
    return txt, info, logs


if __name__ == "__main__":
    out = sys.argv[1]
    cfg = Cfg()
    for kv in sys.argv[2:]:
        k, v = kv.split("=")
        cur = getattr(cfg, k)
        if isinstance(cur, bool):
            v = v in ("1", "true", "True")
        elif isinstance(cur, (int, float)):
            v = type(cur)(float(v))
        setattr(cfg, k, v)
    txt, info, logs = gen(cfg)
    open(out, "w").write(txt)
    print(info)
    for l in logs:
        if cfg.verbose or not l.startswith("pad"):
            print("  ", l)
```

```python
import sys, struct, math
from asmlib import *

KN = "standalone__gqa_softmax__near_ridge_kernel"
SLOT = 12288
VRING = 6 * SLOT
MLBASE = 13 * SLOT
LDS_BYTES = 163840
CSCALE = 192 ** -0.5 * math.log2(math.e)


def f32bits(x):
    return struct.unpack("<I", struct.pack("<f", x))[0]


X = 4
O = {2: [V(4 * d, 4) for d in range(12)],
     3: [V(48 + 4 * d, 4) for d in range(12)],
     1: [A(216 + 4 * d, 4) for d in range(4)] + [V(96 + 4 * d, 4) for d in range(8)],
     0: [A(168 + 4 * d, 4) for d in range(12)],
     X: [A(120 + 4 * d, 4) for d in range(12)]}
S0 = {0: V(128, 8), 1: V(136, 8)}
SX = V(144, 8)
S1 = {"a": {2: V(152, 8), 3: V(160, 8)}, "b": {2: V(168, 8), 3: V(176, 8)}}
P0 = {"a": {0: V(184, 4), 1: V(188, 4)}, "b": {0: V(192, 4), 1: V(196, 4)}}
P1 = {2: V(200, 4), 3: V(204, 4)}
PX = V(208, 4)
NM = {t: V(212 + 4 * t, 4) for t in range(5)}
L = {t: V(232 + t) for t in range(5)}
vK = [V(237), V(238)]
vV = [V(239 + i) for i in range(4)]
voffK, voffV = V(243), V(244)
PS = [V(245), V(246)]
PSX = V(247)
TE = [V(248 + i) for i in range(6)]
X1 = V(255)
Q = {t: [A(24 * t + 4 * ks, 4) for ks in range(6)] for t in range(5)}
F = [A(232 + 4 * i, 4) for i in range(6)]

srdQ, srdK, srdV, srdO, srdW = S(12, 4), S(16, 4), S(20, 4), S(24, 4), S(28, 4)
sW, sTHR, sU, sG, sDMA, sD, sDo, sPOS = S(32), S(33), S(34), S(35), S(36), S(37), S(38), S(39)
sT0, sT1, sT2, sT3 = S(40), S(41), S(42), S(43)
sW3072, sWodd = S(44), S(45)
sC2 = S(46, 2)
sST = S(50, 2)
sSI = S(52)


class Cfg:
    ld = "nt"
    st = ""
    stamps = False
    rt = False
    thr = 2.0 ** 24
    barback = 9
    verbose = False
    xdelay = 0
    xload = 0
    dbg = False
    inner = 1
    dlate = 0
    pref = True
    align8 = False
    apad = 0
    D = 3
    lead = 5


def gen(cfg):
    logs = []

    def dma3(voff, srd, soff, base_sreg, const):
        return [[salu("s_add_u32", "m0", base_sreg, const + t * 896), dma(voff, srd, soff, t * 128, cfg.ld)]
                for t in range(3)]

    tctr = [0]

    def sm_half(Sr, Pr, kt, ps, first, earliest=0):
        out = []
        tt = []
        for e in range(4):
            t = TE[tctr[0] % len(TE)]
            tctr[0] += 1
            tt.append(t)
            i = trans("v_exp_f32", t, Sr[4 * kt + e])
            i.earliest = earliest
            out.append(i)
            if e == 1:
                out.append(valu("v_add_f32", ps, tt[0], tt[1]) if first else valu("v_add_f32", ps, ps, tt[0]))
                if not first:
                    out.append(valu("v_add_f32", ps, ps, tt[1]))
                out.append(valu("v_cvt_pk_bf16_f32", Pr[2 * kt], tt[0], tt[1]))
            if e == 3:
                out.append(valu("v_add_f32", ps, ps, tt[2]))
                out.append(valu("v_add_f32", ps, ps, tt[3]))
                out.append(valu("v_cvt_pk_bf16_f32", Pr[2 * kt + 1], tt[2], tt[3]))
        return out

    def sm_tile(Sr, Pr, ps, e0=0, e1=0):
        return sm_half(Sr, Pr, 0, ps, True, e0) + sm_half(Sr, Pr, 1, ps, False, e1)

    def allrows(op, x, t):
        return [valu("v_mov_b32", t, x), swap16(x, t), valu(op, x, x, t),
                valu("v_mov_b32", t, x), swap32(x, t), valu(op, x, x, t)]

    def rowmax8(Sr, m, t):
        o = [valu("v_max3_f32", m, Sr[0], Sr[1], Sr[2]), valu("v_max3_f32", t, Sr[3], Sr[4], Sr[5]),
             valu("v_max3_f32", m, m, Sr[6], Sr[7]), valu("v_max_f32", m, m, t)]
        return o + allrows("v_max_f32", m, t)

    def stamp():
        if not cfg.stamps:
            return []
        return [raw(f"{'s_memrealtime' if cfg.rt else 's_memtime'} {sST}", "smem", [], sST.names()), smov("m0", sSI),
                wait(lgkm=0),
                raw(f"v_writelane_b32 {X1}, {sST[0]}, m0", "valu", sST[0].names() + ["m0"] + X1.names(), X1.names()),
                salu("s_add_u32", sSI, sSI, 1)]

    def kfrag(i, buf):
        kt, ks = i // 6, i % 6
        return dsr128(buf, vK[ks % 2], kt * 6144 + (ks // 2) * 1024)

    def vfrag(db, buf):
        a_ = vV[db % 4]
        return [dsrtr(buf[0:2], a_, (db // 4) * 1024), dsrtr(buf[2:4], a_, 6144 + (db // 4) * 1024)]

    ENTRY_PEND = [set(F[0].names()), set(F[1].names())]

    pro = []
    a = pro.append
    T = [V(32 + i) for i in range(32)]
    vL = T[0]
    a(scmp("s_cmp_ge_u32", S(2), 256))
    a(branch("s_cbranch_scc1", "L_end", ["scc"]))
    a(raw("s_load_dwordx4 s[4:7], s[0:1], 0", "smem", [], ["s4", "s5", "s6", "s7"]))
    a(raw("s_load_dwordx4 s[8:11], s[0:1], 16", "smem", [], ["s8", "s9", "s10", "s11"]))
    if cfg.stamps:
        a(raw(f"s_load_dwordx2 s[28:29], s[0:1], {32 if cfg.dbg else 40}", "smem", [], ["s28", "s29"]))
        a(smov(sSI, 0))
        a(valu("v_mov_b32", X1, 0))
    vmq = []
    if cfg.pref:
        a(raw("s_getpc_b64 s[48:49]", "salu", [], ["s48", "s49"]))
        a(label("L_pc"))
        a(valu("v_lshlrev_b32", T[1], 7, V(0)))
        a(raw(f"v_min_u32 {T[1]}, L_end-L_pc, {T[1]}", "valu", T[1].names(), T[1].names()))
        a(raw(f"global_load_dword {V(254)}, {T[1]}, s[48:49]", "dma", T[1].names() + ["s48", "s49"], []))
        vmq.append("code")
    a(valu("v_lshrrev_b32", T[2], 6, V(0)))
    a(valu("v_and_b32", vL, 63, V(0)))
    a(valu("v_readfirstlane_b32", sW, T[2]))
    a(salu("s_mul_i32", sT0, S(2), 110592, scc=False))
    a(salu("s_mul_i32", sT1, S(2), 196608, scc=False))
    r8, j8, rh, E, r384 = T[3], T[4], T[5], T[6], T[7]
    a(valu("v_lshrrev_b32", r8, 3, vL))
    a(valu("v_and_b32", j8, 7, vL))
    a(valu("v_lshrrev_b32", rh, 4, vL))
    a(valu("v_mul_u32_u24", r384, 384, r8))
    a(valu("v_xor_b32", E, j8, rh))
    a(valu("v_lshl_add_u32", E, E, 4, r384))
    a(salu("s_mul_i32", sW3072, sW, 3072, scc=False))
    a(salu("s_and_b32", sWodd, sW, 1))
    a(salu("s_lshl_b32", sT2, sWodd, 6))
    a(valu("v_xor_b32", voffK, sT2, E))
    a(valu("v_add_u32", voffK, sW3072, voffK))
    Eo = T[8]
    a(valu("v_xor_b32", Eo, 64, E))
    a(valu("v_lshlrev_b32", T[9], 1, rh))
    a(valu("v_xor_b32", T[9], T[9], j8))
    a(valu("v_lshl_add_u32", voffV, T[9], 4, r384))
    a(valu("v_add_u32", voffV, sW3072, voffV))
    a(salu("s_mul_i32", sT3, sW, 24576, scc=False))
    a(salu("s_lshr_b32", sT2, sW, 1))
    a(salu("s_mul_i32", sT2, sT2, 6144, scc=False))
    a(wait(lgkm=0))
    for srd, lo, off, sz in ((srdK, 6, sT1, 196608), (srdQ, 4, sT0, 110592), (srdV, 8, sT1, 196608),
                             (srdO, 10, sT0, 110592)):
        a(salu("s_add_u32", srd[0], S(lo), off))
        a(salu("s_addc_u32", srd[1], S(lo + 1), 0, rd_scc=True))
        a(smov(srd[2], sz))
        a(smov(srd[3], 0x20000))
    if cfg.stamps:
        a(smov(srdW[2], 256 if cfg.dbg else 0x10000000))
        a(smov(srdW[3], 0x20000))
        a(raw(f"s_memrealtime {sST}", "smem", [], sST.names()))
        a(wait(lgkm=0))
        a(raw(f"v_writelane_b32 {X1}, {sST[0]}, 62", "valu", sST[0].names() + X1.names(), X1.names()))
    pro += stamp()

    def issue(pairs, lab, setg):
        for k, (m, d) in enumerate(pairs):
            a(m)
            if k == 0:
                a(setg)
            a(d)
            vmq.append(lab)

    def vmwait(*labs):
        last = max(i for i, l in enumerate(vmq) if l in labs)
        return len(vmq) - 1 - last

    def ldK(u):
        issue(dma3(voffK, srdK, sG, sW3072, (u % 6) * SLOT), f"K{u}", smov(sG, u * SLOT))

    def ldV(u):
        issue(dma3(voffV, srdV, sG, sW3072, VRING + ((u + 1) % 6) * SLOT), f"V{u}", smov(sG, u * SLOT))

    QORD = [X, 0, 1, 2, 3]
    D = cfg.D

    def ldQ(t, i):
        setg = salu("s_add_u32", sG, sT3, (2 * t + i) * 3072)
        issue(dma3(Eo if i else E, srdQ, sG, sW3072, (2 + t + 6 * i) * SLOT), f"Q{t}", setg)

    def ldX():
        issue(dma3(voffK, srdQ, sG, sW3072, 12 * SLOT), f"Q{X}", smov(sG, 256 * 384))

    dq = [(lambda: ldK(0), None), (ldX, None)]
    for t in range(4):
        dq += [(lambda t=t: ldQ(t, 0), None), (lambda t=t: ldQ(t, 1), None)]
    for g in range(D):
        need = g - 1 if 1 <= g <= 4 else None
        dq += [(lambda g=g: ldK(g + 1), need), (lambda g=g: ldV(g), need)]
    consumed = set()

    def pump(k):
        for _ in range(k):
            if dq:
                fn, need = dq[0]
                assert need is None or need in consumed, need
                dq.pop(0)
                fn()

    if cfg.xdelay:
        a(smov(sU, cfg.xdelay))
        a(label("L_spin"))
        a(nop(13))
        a(salu("s_sub_u32", sU, sU, 1))
        a(scmp("s_cmp_lg_u32", sU, 0))
        a(branch("s_cbranch_scc1", "L_spin", ["scc"]))
    if cfg.xload:
        a(raw("s_load_dwordx2 s[28:29], s[0:1], 40", "smem", [], ["s28", "s29"]))
        a(smov(srdW[2], 0x10000000))
        a(smov(srdW[3], 0x20000))
        a(salu("s_mul_i32", sG, S(2), cfg.xload * SLOT, scc=False))
        a(smov(sU, cfg.xload))
        a(wait(lgkm=0))
        a(label("L_xl"))
        for m_, d_ in dma3(voffK, srdW, sG, sW3072, 0):
            a(m_)
            a(d_)
        a(salu("s_add_u32", sG, sG, SLOT))
        a(salu("s_sub_u32", sU, sU, 1))
        a(scmp("s_cmp_lg_u32", sU, 0))
        a(branch("s_cbranch_scc1", "L_xl", ["scc"]))
        a(wait(vm=0))
    pump(4)
    a(smov(sC2[0], f32bits(CSCALE)))
    a(smov(sC2[1], f32bits(CSCALE)))
    a(smov(sTHR, f32bits(cfg.thr)))
    a(smov(sPOS, SLOT))
    a(smov(sD, SLOT))
    a(smov(sU, 0))
    a(salu("s_add_u32", sDMA, sW3072, ((D + 1) % 6) * SLOT))
    r16, cg, t1, t2 = T[10], T[11], T[12], T[13]
    a(valu("v_and_b32", r16, 15, vL))
    a(valu("v_lshrrev_b32", cg, 4, vL))
    a(valu("v_and_b32", t1, 7, r16))
    a(valu("v_lshlrev_b32", t1, 7, t1))
    a(valu("v_lshrrev_b32", t2, 1, r16))
    a(valu("v_xor_b32", t2, t2, cg))
    a(valu("v_lshl_add_u32", t1, t2, 4, t1))
    a(valu("v_lshrrev_b32", t2, 3, r16))
    a(valu("v_mul_u32_u24", vK[0], 3072, t2))
    a(valu("v_add_u32", vK[0], vK[0], t1))
    a(valu("v_xor_b32", vK[1], 64, vK[0]))
    vQs = [T[14], T[15], T[16], T[17]]
    a(valu("v_mul_u32_u24", vQs[0], 6 * SLOT, t2))
    a(valu("v_add_u32", vQs[0], vQs[0], t1))
    a(salu("s_add_u32", sT0, sW3072, 2 * SLOT))
    a(valu("v_add_u32", vQs[0], sT0, vQs[0]))
    a(valu("v_xor_b32", vQs[1], 64, vQs[0]))
    a(salu("s_add_u32", sT0, sT2, 12 * SLOT))
    a(valu("v_add_u32", vQs[2], sT0, vK[0]))
    a(valu("v_add_u32", vQs[3], sT0, vK[1]))
    a(valu("v_bfe_u32", t1, vL, 2, 3))
    a(valu("v_lshlrev_b32", t2, 7, t1))
    a(valu("v_lshrrev_b32", t1, 1, t1))
    a(valu("v_lshl_add_u32", t2, t1, 5, t2))
    a(valu("v_and_b32", t1, 3, vL))
    a(valu("v_lshl_add_u32", t2, t1, 3, t2))
    a(valu("v_lshrrev_b32", t1, 5, vL))
    a(valu("v_mul_u32_u24", t1, 3072, t1))
    a(valu("v_add_u32", t2, t2, t1))
    a(valu("v_add_u32", vV[0], VRING + SLOT, t2))
    for i in range(1, 4):
        a(valu("v_xor_b32", vV[i], i << 5, vV[0]))
    Z = V(TE[0].i, 4)
    for i in range(4):
        a(valu("v_mov_b32", Z[i], 0))
    for t in range(5):
        a(valu("v_mov_b32", L[t], 0))
    for g in [V(64 + 16 * i, 16) for i in range(4)] + [A(120 + 16 * i, 16) for i in range(7)]:
        a(mfma32(g, Z, Z, 0))
    KF = ([S1["a"][2][0:4], S1["a"][2][4:8], S1["a"][3][0:4], S1["a"][3][4:8], P0["b"][0], P0["b"][1], P1[2], P1[3]]
          + F[2:6])
    pump(cfg.lead - 4)
    a(wait(vm=vmwait("K0", f"Q{X}")))
    a(barrier())
    pro += stamp()
    RAW = [V(4 * i, 4) for i in range(6)]
    UT = [V(24 + 2 * i, 2) for i in range(4)]
    Sdst = {0: S0[0], 1: S0[1], X: SX, 2: S1["b"][2], 3: S1["b"][3]}
    for t in QORD:
        if t != X:
            pro.extend(stamp())
            a(wait(vm=vmwait(f"Q{t}")))
            pro.extend(stamp())
        for ks in range(6):
            if t == X:
                a(dsr128(RAW[ks], vQs[2 + ks % 2], (ks // 2) * 1024))
            else:
                a(dsr128(RAW[ks], vQs[ks % 2], t * SLOT + (ks // 2) * 1024))
        if t == X:
            for i in range(12):
                a(kfrag(i, KF[i]))
            for i in range(2):
                a(valu("v_add_u32", vK[i], sPOS, vK[i]))
        pump(1)
        for ks in range(6):
            for r in range(4):
                u2 = UT[r]
                a(valu("v_lshlrev_b32", u2[0], 16, RAW[ks][r]))
                a(valu("v_and_b32", u2[1], 0xFFFF0000, RAW[ks][r]))
            for r in range(4):
                a(valu("v_pk_mul_f32", UT[r], UT[r], sC2))
            for r in range(4):
                a(valu("v_cvt_pk_bf16_f32", UT[r][0], UT[r][0], UT[r][1]))
            for r in range(4):
                a(valu("v_accvgpr_write_b32", Q[t][ks][r], UT[r][0]))
            if ks >= 1:
                for kt in range(2):
                    Dd = Sdst[t][4 * kt:4 * kt + 4]
                    a(mfma16(Dd, KF[6 * kt + ks - 1], Q[t][ks - 1], 0 if ks == 1 else Dd))
        consumed.add(t)
        for kt in range(2):
            Dd = Sdst[t][4 * kt:4 * kt + 4]
            a(mfma16(Dd, KF[6 * kt + 5], Q[t][5], Dd))
        pump(1)
        if t == QORD[-1]:
            for i in range(4):
                a(valu("v_mov_b32", Z[i], 0))
            for g in [V(16 * i, 16) for i in range(2)]:
                a(mfma32(g, Z, Z, 0))
        m_, tt_ = TE[4], TE[5]
        pro += rowmax8(Sdst[t], m_, tt_)
        for i in range(8):
            a(valu("v_sub_f32", Sdst[t][i], Sdst[t][i], m_))
        for i in range(4):
            a(valu("v_sub_f32", NM[t][i], 0, m_))
        if t in (0, 1):
            pro += sm_tile(S0[t], P0["a"][t], L[t])
        if t == X:
            pro += sm_half(SX, PX, 0, PSX, True)
    pro += stamp()
    a(wait(vm=vmwait("K1", "V0")))
    a(barrier())
    pro += stamp()
    a(kfrag(0, F[0]))
    a(kfrag(1, F[1]))
    pump(100)
    assert vmwait("K1", "V0") == 6 * (D - 1)
    for g in [V(32 + 16 * i, 16) for i in range(2)]:
        a(mfma32(g, Z, Z, 0))
    a(valu("v_add_u32", voffK, SLOT, voffK))
    a(smov(sG, D * SLOT))
    a(scmp("s_cmp_lg_u32", sWodd, 0))
    a(branch("s_cbranch_scc1", "L_enterB", ["scc"]))
    pro, pend = finalize2(pro, log=logs)
    assert pend[-2:] == ENTRY_PEND, pend
    proB = [label("L_enterB")]
    for t in (2, 3):
        for i in range(8):
            proB.append(valu("v_mov_b32", S1["a"][t][i], S1["b"][t][i]))
    for t in (0, 1):
        for i in range(4):
            proB.append(valu("v_mov_b32", P0["b"][t][i], P0["a"][t][i]))
    proB.append(branch("s_branch", "L_B"))
    proB, _ = finalize2(proB, hist=pro[-30:], log=logs)

    slow_blocks = []

    def slow(name, ret, items):
        o = [label(name), nop(16)]
        for t, Sr, Pr, ps, Sn in items:
            d, f, tmp = TE[0], TE[1], TE[2]
            o += rowmax8(Sr, d, tmp)
            o.append(valu("v_max_f32", d, 0, d))
            o.append(valu("v_sub_f32", f, 0, d))
            o.append(trans("v_exp_f32", f, f))
            for i in range(4):
                o.append(valu("v_sub_f32", NM[t][i], NM[t][i], d))
            for i in range(8):
                o.append(valu("v_sub_f32", Sr[i], Sr[i], d))
            if Sn is not None:
                for i in range(8):
                    o.append(valu("v_sub_f32", Sn[i], Sn[i], d))
            o.append(valu("v_mul_f32", L[t], f, L[t]))
            for g in O[t]:
                for i in range(4):
                    r = g[i]
                    if r.f == "v":
                        o.append(valu("v_mul_f32", r, f, r))
                    else:
                        tq = TE[2 + i % 2]
                        o.append(valu("v_accvgpr_read_b32", tq, r))
                        o.append(valu("v_mul_f32", tq, f, tq))
                        o.append(valu("v_accvgpr_write_b32", r, tq))
            o += sm_tile(Sr, Pr, ps)
        o.append(nop(4))
        o.append(branch("s_branch", ret))
        o, _ = finalize2(o)
        slow_blocks.append(o)

    def chk(pss):
        t = TE[tctr[0] % len(TE)]
        tctr[0] += 1
        o = [valu("v_max3_f32", t, *pss) if len(pss) == 3 else valu("v_max_f32", t, *pss)]
        o.append(valu("v_cmp_lt_f32", "vcc", sTHR, t))
        return o

    def block(B):
        isA = B == "A"
        sw, sr = ("a", "b") if isA else ("b", "a")
        pr, pw = ("a", "b") if isA else ("b", "a")
        Sw = {0: S0[0], 1: S0[1], 2: S1[sw][2], 3: S1[sw][3], X: SX}
        Pr = {0: P0[pr][0], 1: P0[pr][1], 2: P1[2], 3: P1[3], X: PX}
        qt = [0, 1, 2, 3] + ([] if isA else [X])
        pt = [0, 1, 2, 3] + ([X] if isA else [])
        mf, kpos, kend, last = [], {}, {}, {}
        for i in range(12):
            kt, ks = i // 6, i % 6
            kpos[i] = len(mf)
            for t in qt:
                Dd = Sw[t][4 * kt:4 * kt + 4]
                last[(t, kt)] = len(mf)
                mf.append(mfma16(Dd, F[i % 3], Q[t][ks], NM[t] if ks == 0 else Dd))
            kend[i] = len(mf)
        nq = len(mf)
        vb = lambda db: [F[3], F[4], F[5], F[2]][db % 4]
        vpos, vend = {}, {}
        for db in range(12):
            vpos[db] = len(mf)
            for t in pt:
                mf.append(mfma16(O[t][db], vb(db), Pr[t], O[t][db]))
            vend[db] = len(mf)
        n = len(mf)
        sc = Sched(mf)
        gb = n - cfg.barback
        for i in range(1, 12):
            sc.wres[kpos[i]] = True
        for db in range(12):
            if vpos[db] < gb:
                sc.wres[vpos[db]] = True
        assert not sc.wres[gb]
        sc.wres[n] = True
        sc.put_vec_from(1, [kfrag(2, F[2])])
        for i in range(3, 12):
            sc.put_vec_from(kend[i - 3], [kfrag(i, F[i % 3])])
        for db in range(3):
            sc.put_vec_from(kpos[9 + db] + 1, vfrag(db, vb(db)))
        sc.put_vec_from(nq, vfrag(3, vb(3)))
        gl = 0
        for db in range(4, 12):
            gl = sc.put_vec_from(vend[db - 4], vfrag(db, vb(db)))
        assert gl < gb
        if cfg.inner == 1:
            sc.put_sc(gb, *stamp())
        sc.put_sc(gb, wait(vm=6 * (D - 1), lgkm=0), barrier())
        if cfg.inner == 1:
            sc.put_sc(gb, *stamp())
        if cfg.inner == 2 and cfg.stamps:
            st_ = stamp()
            sc.put_sc(gb, st_[1], st_[4], st_[3], st_[0])
        sc.put_vec_from(gb, [kfrag(0, F[0]), kfrag(1, F[1])])
        dmask = sum(1 << u for u in range(32) if (u + D + 1) % 6 == 5)
        g = sc.put_sc_from(1, [scmp("s_bitcmp1_b32", 0x10410, sU),
                               salu("s_cselect_b32", sD, (-5 * SLOT) & 0xFFFFFFFF, sPOS, scc=False, rd_scc=True),
                               scmp("s_bitcmp1_b32", dmask, sU),
                               salu("s_cselect_b32", sDo, (-5 * SLOT) & 0xFFFFFFFF, sPOS, scc=False, rd_scc=True)])
        dm = dma3(voffK, srdK, sG, sDMA, 0) + dma3(voffV, srdV, sG, sDMA, VRING)
        d0, d1 = (nq + 4, gb - 6) if isA else (g + 2, nq - 16)
        for k, (m_, d_) in enumerate(dm):
            g = d0 + (d1 - d0) * k // 5
            while not (sc.sc_free(g) and sc.free(g + 1) >= 2):
                g += 1
            sc.put_sc(g, m_)
            sc.put_vec(g + 1, d_)
        assert g + 1 < gb
        g = sc.put_sc_from(g + 2, [salu("s_add_u32", sDMA, sDMA, sDo), salu("s_add_u32", sG, sG, SLOT),
                                   scmp("s_cmp_ge_u32", sU, 15 - D),
                                   salu("s_cselect_b32", sDMA, LDS_BYTES, sDMA, scc=False, rd_scc=True),
                                   salu("s_add_u32", sU, sU, 1)], gmax=n - 4)
        gc1 = nq + 2
        assert sc.sc_free(gc1)
        sc.put_sc(gc1, branch("s_cbranch_vccnz", f"L_slow1{B}", ["vcc"]), label(f"L_ret1{B}"))
        gc0 = n - 2
        assert sc.sc_free(gc0) and gc0 >= vpos[11] + 2
        sc.put_sc(gc0, branch("s_cbranch_vccnz", f"L_slow0{B}", ["vcc"]), label(f"L_ret0{B}"))
        sc.put_vec(gc0, valu("v_add_f32", L[0], L[0], PS[0]), valu("v_add_f32", L[1], L[1], PS[1]))
        assert sc.sc_free(n - 1)
        sc.put_sc(n - 1, scmp("s_cmp_eq_u32", sU, 15))
        sc.tail[n].append(branch("s_cbranch_scc1", "L_tailB" if isA else "L_tailA", ["scc"]))
        if not isA:
            sc.tail[n].append(branch("s_branch", "L_A"))
        st1 = sm_tile(S1[sr][2], P1[2], PS[0]) + sm_tile(S1[sr][3], P1[3], PS[1])
        if isA:
            st1 += sm_half(SX, PX, 1, PSX, False) + chk([PS[0], PS[1], PSX])
        else:
            st1 += chk([PS[0], PS[1]]) + sm_half(SX, PX, 0, PSX, True, last[(X, 0)] + 5)
        e1, x1 = sc.fill(st1, 1, gc1 - 1, name=f"{B}.st1")
        items = [(t, S1[sr][t], P1[t], PS[t - 2], S1[sw][t]) for t in (2, 3)]
        if isA:
            items.append((X, SX, PX, PSX, None))
        slow(f"L_slow1{B}", f"L_ret1{B}", items)
        st0 = [valu("v_add_f32", L[2], L[2], PS[0]), valu("v_add_f32", L[3], L[3], PS[1])]
        if isA:
            st0.append(valu("v_add_f32", L[X], L[X], PSX))
        st0 += [valu("v_add_u32", x, sD, x) for x in vK]
        st0 += sm_tile(S0[0], P0[pw][0], PS[0]) + sm_tile(S0[1], P0[pw][1], PS[1]) + chk([PS[0], PS[1]])
        adv = [valu("v_add_u32", x, sD, x) for x in vV]
        sc.put_vec_from(n - 1, adv[0:2])
        for i in adv[2:4]:
            i.earliest = gl + 1
        e0, x0 = sc.fill(st0 + adv[2:4], gc1, gc0 - 1, name=f"{B}.st0")
        slow(f"L_slow0{B}", f"L_ret0{B}", [(t, S0[t], P0[pw][t], PS[t], None) for t in (0, 1)])
        logs.append(f"block {B}: st1 ends gap {e1}/{gc1 - 1} (+{x1} overfull), st0 ends {e0}/{gc0 - 1} (+{x0})")
        seq = [label(f"L_{B}")] + sc.emit()
        k = max(i for i, x in enumerate(seq) if x.kind in MFMA_KINDS)
        seq.insert(k + 1, wait(lgkm=1))
        out, pend = finalize2(seq, pend=ENTRY_PEND[1:], log=logs)
        assert pend[-1:] == ENTRY_PEND[1:], pend
        return out

    blkA = block("A")
    blkB = block("B")
    pro[-2:-2] = [wait(lgkm=1)]

    VF = [A(4 * db, 4) for db in range(12)]

    def tail(B):
        isA = B == "A"
        sr = "b" if isA else "a"
        pr = "a" if isA else "b"
        mf = []
        for db in range(12):
            for t in (0, 1):
                mf.append(mfma16(O[t][db], VF[db], P0[pr][t], O[t][db]))
        sc = Sched(mf, cap=3)
        n = len(mf)
        pre = []
        for db in range(4):
            pre += vfrag(db, VF[db])
        for db in range(4, 12):
            sc.put_vec_from(2 * (db - 4) + 1, vfrag(db, VF[db]))
        st = []
        if isA:
            st += sm_half(SX, PX, 1, PSX, False)
        st += sm_tile(S1[sr][2], P1[2], PS[0]) + sm_tile(S1[sr][3], P1[3], PS[1])
        st += chk([PS[0], PS[1], PSX] if isA else [PS[0], PS[1]])
        pre += st[:10]
        sc.cap[n] = 1000
        sc.fill(st[10:], 1, n, name="tail")
        seq = [label(f"L_tail{B}")] + stamp() + pre + sc.emit()
        seq += [branch("s_cbranch_vccnz", f"L_slowT{B}", ["vcc"]), label(f"L_retT{B}"),
                valu("v_add_f32", L[2], L[2], PS[0]), valu("v_add_f32", L[3], L[3], PS[1])]
        items = [(t, S1[sr][t], P1[t], PS[t - 2], None) for t in (2, 3)]
        if isA:
            seq.append(valu("v_add_f32", L[X], L[X], PSX))
            items.append((X, SX, PX, PSX, None))
            for db in range(12):
                seq.append(mfma16(O[X][db], VF[db], PX, O[X][db]))
        else:
            seq.append(branch("s_branch", "L_fin"))
        slow(f"L_slowT{B}", f"L_retT{B}", items)
        out, pend = finalize2(seq, pend=ENTRY_PEND[1:], log=logs)
        assert not pend, pend
        return out

    tailB = tail("B")
    tailA = tail("A")

    fin = [label("L_fin")] + stamp()
    a = fin.append
    E_ = [V(128 + i) for i in range(72)]
    lane, q16, gq, t1, t2, t3 = E_[0], E_[1], E_[2], E_[3], E_[4], E_[5]
    INV = {t: V(E_[6].i + 2 * t, 2) for t in range(4)}
    wa = [E_[14 + i] for i in range(4)]
    ra = [E_[18 + i] for i in range(3)]
    so, xw, xr, ma = E_[21], E_[22], E_[23], E_[24]
    ml = V(E_[26].i, 2)
    MLo = [V(E_[28].i, 2), V(E_[30].i, 2)]
    TMP = [V(E_[32].i + 4 * i, 4) for i in range(4)]
    DT = [V(E_[48].i + 4 * i, 4) for i in range(6)]
    pre = []
    b = pre.append
    b(valu("v_mbcnt_lo_u32_b32", lane, -1, 0))
    b(valu("v_mbcnt_hi_u32_b32", lane, -1, lane))

    def inv_of(t):
        return allrows("v_add_f32", L[t], t1) + [trans("v_rcp_f32", INV[t][0], L[t])]

    pre += inv_of(0)
    b(valu("v_and_b32", q16, 15, lane))
    b(valu("v_lshrrev_b32", gq, 4, lane))
    b(salu("s_mul_i32", sT0, sW, 24576, scc=False))
    b(valu("v_mul_u32_u24", t2, 384, q16))
    b(valu("v_and_b32", t3, 7, q16))
    b(valu("v_lshrrev_b32", t1, 1, gq))
    b(valu("v_xor_b32", t3, t3, t1))
    b(valu("v_lshl_add_u32", t2, t3, 4, t2))
    b(valu("v_and_b32", t3, 1, gq))
    b(valu("v_lshl_add_u32", t2, t3, 3, t2))
    b(valu("v_add_u32", wa[0], sT0, t2))
    for i in range(1, 4):
        b(valu("v_xor_b32", wa[i], i << 5, wa[0]))

    def epi_tile(t):
        o = []
        for db in range(12):
            g = O[t][db]
            src = g
            if g.f == "a":
                src = TMP[db % 4]
                for i in range(4):
                    o.append(valu("v_accvgpr_read_b32", src[i], g[i]))
            o.append(valu("v_pk_mul_f32", src[0:2], src[0:2], INV[t], extra="op_sel_hi:[1,0]"))
            o.append(valu("v_pk_mul_f32", src[2:4], src[2:4], INV[t], extra="op_sel_hi:[1,0]"))
            o.append(valu("v_cvt_pk_bf16_f32", src[0], src[0], src[1]))
            o.append(valu("v_cvt_pk_bf16_f32", src[1], src[2], src[3]))
            o.append(dsw64(wa[db % 4], src[0:2], t * 6144 + (db // 4) * 128))
        return o

    def readback(t, dst):
        return [dsr128(dst[i], ra[i % 3], t * 6144 + (i // 3) * 3072) for i in range(6)]

    def stores(t, dst):
        o = []
        for i in range(6):
            off = t * 6144 + i * 1024
            o.append(smov(sT3, off & ~4095))
            o.append(vstore(dst[i], so, srdO, sT3, off & 4095, cfg.st))
        return o

    addr2 = []
    c = addr2.append
    for i in range(3):
        c(valu("v_add_u32", t1, 64 * i, lane))
        c(valu("v_mul_u32_u24", t2, 2731, t1))
        c(valu("v_bfe_u32", t2, t2, 16, 3))
        c(valu("v_xor_b32", t1, t1, t2))
        c(valu("v_lshl_add_u32", ra[i], t1, 4, sT0))
    c(valu("v_lshl_add_u32", so, lane, 4, sT0))
    mf = []
    for t in (2, 3):
        for db in range(12):
            mf.append(mfma16(O[t][db], VF[db], P1[t], O[t][db]))
    st = pre + epi_tile(0) + addr2 + readback(0, DT) + inv_of(1)
    k = 0
    for m_ in mf:
        fin.append(m_)
        fin += st[k:k + 3]
        k += 3
    fin += st[k:]
    e1 = epi_tile(1)
    fin += e1[:20]
    fin += stores(0, DT)
    fin += e1[20:]
    D1 = [V(96 + 4 * i, 4) for i in range(6)]
    fin += readback(1, D1)
    a(salu("s_lshr_b32", sT1, sW, 1))
    a(salu("s_mul_i32", sT1, sT1, 3 * SLOT, scc=False))
    a(salu("s_add_u32", sT1, sT1, 8 * SLOT))
    a(salu("s_mul_i32", sT2, sWodd, SLOT, scc=False))
    a(salu("s_add_u32", sT2, sT2, sT1))
    a(valu("v_lshl_add_u32", xw, lane, 4, sT2))
    a(salu("s_mul_i32", sT2, sWodd, 6144, scc=False))
    a(salu("s_add_u32", sT2, sT2, sT1))
    a(valu("v_lshl_add_u32", xr, lane, 4, sT2))
    for db in range(12):
        a(dsw128(xw, O[X][db], db * 1024))
    fin += allrows("v_add_f32", L[X], t1)
    a(valu("v_mov_b32", ml[0], NM[X][0]))
    a(valu("v_mov_b32", ml[1], L[X]))
    a(salu("s_lshr_b32", sT1, sW, 1))
    a(salu("s_lshl_b32", sT1, sT1, 8))
    a(salu("s_add_u32", sT1, sT1, MLBASE))
    a(valu("v_lshl_add_u32", ma, q16, 3, sT1))
    a(salu("s_lshl_b32", sT2, sWodd, 7))
    a(valu("v_add_u32", t1, sT2, ma))
    a(dsw64(t1, ml))
    fin += inv_of(2)
    fin += stores(1, D1)
    fin += epi_tile(2)
    D2 = [V(4 * i, 4) for i in range(6)]
    fin += readback(2, D2)
    fin += inv_of(3)
    e3 = epi_tile(3)
    fin += e3[:15]
    fin += stores(2, D2)
    fin += e3[15:]
    D3 = [V(48 + 4 * i, 4) for i in range(6)]
    fin += readback(3, D3)
    a(wait(lgkm=6))
    a(barrier())
    XS = [[V(24 + 4 * k, 4) for k in range(6)], [V(72 + 4 * k, 4) for k in range(6)]]
    for s_ in range(2):
        a(dsr64(MLo[s_], ma, s_ * 128))
    for s_ in range(2):
        for k in range(6):
            a(dsr128(XS[s_][k], xr, s_ * SLOT + k * 1024))
    fin += stores(3, D3)
    a(valu("v_min_f32", t1, MLo[0][0], MLo[1][0]))
    for s_ in range(2):
        a(valu("v_sub_f32", MLo[s_][0], t1, MLo[s_][0]))
    for s_ in range(2):
        a(trans("v_exp_f32", MLo[s_][0], MLo[s_][0]))
    a(valu("v_mul_u32_u24", t3, 384, q16))
    a(valu("v_mul_f32", t2, MLo[0][0], MLo[0][1]))
    a(valu("v_fma_f32", t2, MLo[1][0], MLo[1][1], t2))
    a(trans("v_rcp_f32", t2, t2))
    a(valu("v_and_b32", t1, 1, gq))
    a(valu("v_lshl_add_u32", t3, t1, 5, t3))
    a(valu("v_lshrrev_b32", t1, 1, gq))
    a(valu("v_lshl_add_u32", t3, t1, 4, t3))
    for s_ in range(2):
        a(valu("v_mul_f32", MLo[s_][0], MLo[s_][0], t2))
    a(salu("s_lshr_b32", sT1, sW, 1))
    a(salu("s_mul_i32", sT1, sT1, 6144, scc=False))
    a(salu("s_mul_i32", sT2, sWodd, 192, scc=False))
    a(salu("s_add_u32", sT1, sT1, sT2))
    a(salu("s_add_u32", sT1, sT1, 256 * 384))
    for k in range(6):
        for h in range(2):
            x0, x1 = XS[0][k][2 * h:2 * h + 2], XS[1][k][2 * h:2 * h + 2]
            a(valu("v_pk_mul_f32", x0, x0, MLo[0], extra="op_sel_hi:[1,0]"))
            a(valu("v_pk_fma_f32", x0, x1, MLo[1], x0, extra="op_sel_hi:[1,0,1]"))
    for kp in range(3):
        dq = XS[1][kp]
        g0, g1 = XS[0][2 * kp], XS[0][2 * kp + 1]
        a(valu("v_cvt_pk_bf16_f32", dq[0], g0[0], g0[1]))
        a(valu("v_cvt_pk_bf16_f32", dq[1], g0[2], g0[3]))
        a(valu("v_cvt_pk_bf16_f32", dq[2], g1[0], g1[1]))
        a(valu("v_cvt_pk_bf16_f32", dq[3], g1[2], g1[3]))
        a(swap16(dq[0], dq[2]))
        a(swap16(dq[1], dq[3]))
        a(vstore(dq, t3, srdO, sT1, kp * 64, ""))
    if cfg.stamps:
        fin += stamp()
        a(wait(vm=0))
        fin += stamp()
        a(raw(f"s_memrealtime {sST}", "smem", [], sST.names()))
        a(wait(lgkm=0))
        a(raw(f"v_writelane_b32 {X1}, {sST[0]}, 63", "valu", sST[0].names() + X1.names(), X1.names()))
        a(salu("s_lshl_b32", sT2, S(2), 2))
        a(salu("s_add_u32", sT2, sT2, sW))
        a(salu("s_lshl_b32", sT2, sT2, 8))
        a(valu("v_lshlrev_b32", t1, 2, lane))
        if cfg.dbg:
            a(raw(f"v_readlane_b32 {sT0}, {X1}, 62", "valu", X1.names(), sT0.names()))
            a(valu("v_add_u32", t2, 8, t1))
            a(raw(f"ds_bpermute_b32 {t3}, {t2}, {X1}", "dsr", t2.names() + X1.names(), t3.names()))
            a(valu("v_subrev_u32", t3, sT0, t3))
            a(raw(f"v_writelane_b32 {t3}, {sST[0]}, 14", "valu", sST[0].names() + t3.names(), t3.names()))
            a(salu("s_not_b32", sT0, sT0))
            a(raw(f"v_writelane_b32 {t3}, {sT0}, 15", "valu", sT0.names() + t3.names(), t3.names()))
            a(raw("s_mov_b64 exec, 0xffff", "salu", [], ["exec"]))
            a(vstore(t3, t1, srdW, 0, 0, "", op="buffer_atomic_umax"))
        else:
            a(vstore(X1, t1, srdW, sT2, 0, "", op="buffer_store_dword"))
    a(label("L_end"))
    a(raw("s_endpgm", "br"))
    fin, _ = finalize2(fin, hist=tailA[-30:], log=logs)

    for blk in (pro, blkA, blkB, tailA, tailB, fin):
        lastw = None
        for i in blk:
            if "scc" in i.rd:
                ok = lastw is not None and (lastw.txt.startswith("s_cmp") or lastw.txt.startswith("s_bitcmp")
                                            or i.txt.startswith("s_addc"))
                assert ok, (lastw, i)
            if "scc" in i.wr:
                lastw = i
    bad = 0
    bad += check_path("pro-A-B", pro, blkA, blkB, blkA)
    bad += check_path("pro-B-A", pro, proB, blkB, blkA, blkB)
    bad += check_path("A-tailB-fin", blkA, tailB, fin)
    bad += check_path("B-tailA-fin", blkB, tailA, fin)
    assert bad == 0
    info = dict(A=est16(blkA), B=est16(blkB), nA=len(blkA), nB=len(blkB), pro=est16(pro),
                tailA=est16(tailA), tailB=est16(tailB), fin=est16(fin))

    body = pro + blkA + blkB + proB + tailB + tailA + fin
    for o in slow_blocks:
        body += o
    hdr = f"""; Flash-style attention forward, one workgroup (4 waves, one per SIMD, 512 registers) per (batch, head).
; Softmax: running reference max per row (true max of the keys seen when it was last set); every 32-key unit is
; checked and falls back to a rescale with the true running max when the partial sum leaves the safe range.
; @launch grid=(256,1,1) block=(256,1,1) lds={LDS_BYTES}
.amdgcn_target "amdgcn-amd-amdhsa--gfx950"
.text
.globl {KN}
.p2align 8
.type {KN},@function
{KN}:
"""
    ftr = f"""
.section .rodata,"a"
.p2align 6
.amdhsa_kernel {KN}
  .amdhsa_next_free_vgpr 512
  .amdhsa_next_free_sgpr 64
  .amdhsa_accum_offset 256
  .amdhsa_group_segment_fixed_size 0
  .amdhsa_kernarg_size 48
  .amdhsa_user_sgpr_count 2
  .amdhsa_user_sgpr_kernarg_segment_ptr 1
  .amdhsa_system_sgpr_workgroup_id_x 1
  .amdhsa_float_denorm_mode_32 3
.end_amdhsa_kernel
"""
    txt = hdr + "\n".join(("" if i.kind == "label" else "    ") + i.txt for i in body) + ftr
    return txt, info, logs


if __name__ == "__main__":
    out = sys.argv[1]
    cfg = Cfg()
    for kv in sys.argv[2:]:
        k, v = kv.split("=")
        cur = getattr(cfg, k)
        if isinstance(cur, bool):
            v = v in ("1", "true", "True")
        elif isinstance(cur, (int, float)):
            v = type(cur)(float(v))
        setattr(cfg, k, v)
    txt, info, logs = gen(cfg)
    open(out, "w").write(txt)
    print(info)
    for l in logs:
        if cfg.verbose or not l.startswith("pad"):
            print("  ", l)
```

```python
import sys, struct, math
from asmlib import *

KN = "standalone__gqa_softmax__near_ridge_kernel"
SLOT = 12288
VRING = 6 * SLOT
MLBASE = 13 * SLOT
LDS_BYTES = 163840
CSCALE = 192 ** -0.5 * math.log2(math.e)


def f32bits(x):
    return struct.unpack("<I", struct.pack("<f", x))[0]


X = 4
O = {0: [V(4 * d, 4) for d in range(12)],
     1: [V(48 + 4 * d, 4) for d in range(12)],
     2: [V(96 + 4 * d, 4) for d in range(8)] + [A(216 + 4 * d, 4) for d in range(4)],
     3: [A(168 + 4 * d, 4) for d in range(12)],
     X: [A(120 + 4 * d, 4) for d in range(12)]}
S0 = {0: V(128, 8), 1: V(136, 8)}
SX = V(144, 8)
S1 = {"a": {2: V(152, 8), 3: V(160, 8)}, "b": {2: V(168, 8), 3: V(176, 8)}}
P0 = {"a": {0: V(184, 4), 1: V(188, 4)}, "b": {0: V(192, 4), 1: V(196, 4)}}
P1 = {2: V(200, 4), 3: V(204, 4)}
PX = V(208, 4)
NM = {t: V(212 + 4 * t, 4) for t in range(5)}
L = {t: V(232 + t) for t in range(5)}
vK = [V(237), V(238)]
vV = [V(239 + i) for i in range(4)]
voffK, voffV = V(243), V(244)
PS = [V(245), V(246)]
PSX = V(247)
TE = [V(248 + i) for i in range(6)]
X1 = V(255)
Q = {t: [A(24 * t + 4 * ks, 4) for ks in range(6)] for t in range(5)}
F = [A(232 + 4 * i, 4) for i in range(6)]

srdQ, srdK, srdV, srdO, srdW = S(12, 4), S(16, 4), S(20, 4), S(24, 4), S(28, 4)
sW, sTHR, sU, sG, sDMA, sD, sDo, sPOS = S(32), S(33), S(34), S(35), S(36), S(37), S(38), S(39)
sT0, sT1, sT2, sT3 = S(40), S(41), S(42), S(43)
sW3072, sWodd = S(44), S(45)
sC2 = S(46, 2)
sST = S(50, 2)
sSI = S(52)


class Cfg:
    ld = "nt"
    st = ""
    stamps = False
    rt = False
    thr = 2.0 ** 24
    barback = 9
    verbose = False
    tstamps = False
    nostore = False
    stx = ""
    sdist = 12
    sgap = 6
    xdelay = 0
    xload = 0
    dbg = False
    inner = 1
    dlate = 0
    pref = True
    align8 = False
    apad = 0
    D = 3
    lead = 5


def gen(cfg):
    logs = []

    def dma3(voff, srd, soff, base_sreg, const):
        return [[salu("s_add_u32", "m0", base_sreg, const + t * 896), dma(voff, srd, soff, t * 128, cfg.ld)]
                for t in range(3)]

    tctr = [0]

    def sm_half(Sr, Pr, kt, ps, first, earliest=0):
        out = []
        tt = []
        for e in range(4):
            t = TE[tctr[0] % len(TE)]
            tctr[0] += 1
            tt.append(t)
            i = trans("v_exp_f32", t, Sr[4 * kt + e])
            i.earliest = earliest
            out.append(i)
            if e == 1:
                out.append(valu("v_add_f32", ps, tt[0], tt[1]) if first else valu("v_add_f32", ps, ps, tt[0]))
                if not first:
                    out.append(valu("v_add_f32", ps, ps, tt[1]))
                out.append(valu("v_cvt_pk_bf16_f32", Pr[2 * kt], tt[0], tt[1]))
            if e == 3:
                out.append(valu("v_add_f32", ps, ps, tt[2]))
                out.append(valu("v_add_f32", ps, ps, tt[3]))
                out.append(valu("v_cvt_pk_bf16_f32", Pr[2 * kt + 1], tt[2], tt[3]))
        return out

    def sm_tile(Sr, Pr, ps, e0=0, e1=0):
        return sm_half(Sr, Pr, 0, ps, True, e0) + sm_half(Sr, Pr, 1, ps, False, e1)

    def allrows(op, x, t):
        return [valu("v_mov_b32", t, x), swap16(x, t), valu(op, x, x, t),
                valu("v_mov_b32", t, x), swap32(x, t), valu(op, x, x, t)]

    def rowmax8(Sr, m, t):
        o = [valu("v_max3_f32", m, Sr[0], Sr[1], Sr[2]), valu("v_max3_f32", t, Sr[3], Sr[4], Sr[5]),
             valu("v_max3_f32", m, m, Sr[6], Sr[7]), valu("v_max_f32", m, m, t)]
        return o + allrows("v_max_f32", m, t)

    def stamp():
        if not cfg.stamps:
            return []
        return [raw(f"{'s_memrealtime' if cfg.rt else 's_memtime'} {sST}", "smem", [], sST.names()), smov("m0", sSI),
                wait(lgkm=0),
                raw(f"v_writelane_b32 {X1}, {sST[0]}, m0", "valu", sST[0].names() + ["m0"] + X1.names(), X1.names()),
                salu("s_add_u32", sSI, sSI, 1)]

    def kfrag(i, buf):
        kt, ks = i // 6, i % 6
        return dsr128(buf, vK[ks % 2], kt * 6144 + (ks // 2) * 1024)

    def vfrag(db, buf):
        a_ = vV[db % 4]
        return [dsrtr(buf[0:2], a_, (db // 4) * 1024), dsrtr(buf[2:4], a_, 6144 + (db // 4) * 1024)]

    ENTRY_PEND = [set(F[0].names()), set(F[1].names())]

    pro = []
    a = pro.append
    T = [V(32 + i) for i in range(32)]
    vL = T[0]
    a(scmp("s_cmp_ge_u32", S(2), 256))
    a(branch("s_cbranch_scc1", "L_end", ["scc"]))
    a(raw("s_load_dwordx4 s[4:7], s[0:1], 0", "smem", [], ["s4", "s5", "s6", "s7"]))
    a(raw("s_load_dwordx4 s[8:11], s[0:1], 16", "smem", [], ["s8", "s9", "s10", "s11"]))
    if cfg.stamps:
        a(raw(f"s_load_dwordx2 s[28:29], s[0:1], {32 if cfg.dbg else 40}", "smem", [], ["s28", "s29"]))
        a(smov(sSI, 0))
        a(valu("v_mov_b32", X1, 0))
    vmq = []
    if cfg.pref:
        a(raw("s_getpc_b64 s[48:49]", "salu", [], ["s48", "s49"]))
        a(label("L_pc"))
        a(valu("v_lshlrev_b32", T[1], 7, V(0)))
        a(raw(f"v_min_u32 {T[1]}, L_end-L_pc, {T[1]}", "valu", T[1].names(), T[1].names()))
        a(raw(f"global_load_dword {V(254)}, {T[1]}, s[48:49]", "dma", T[1].names() + ["s48", "s49"], []))
        vmq.append("code")
    a(valu("v_lshrrev_b32", T[2], 6, V(0)))
    a(valu("v_and_b32", vL, 63, V(0)))
    a(valu("v_readfirstlane_b32", sW, T[2]))
    a(salu("s_mul_i32", sT0, S(2), 110592, scc=False))
    a(salu("s_mul_i32", sT1, S(2), 196608, scc=False))
    r8, j8, rh, E, r384 = T[3], T[4], T[5], T[6], T[7]
    a(valu("v_lshrrev_b32", r8, 3, vL))
    a(valu("v_and_b32", j8, 7, vL))
    a(valu("v_lshrrev_b32", rh, 4, vL))
    a(valu("v_mul_u32_u24", r384, 384, r8))
    a(valu("v_xor_b32", E, j8, rh))
    a(valu("v_lshl_add_u32", E, E, 4, r384))
    a(salu("s_mul_i32", sW3072, sW, 3072, scc=False))
    a(salu("s_and_b32", sWodd, sW, 1))
    a(salu("s_lshl_b32", sT2, sWodd, 6))
    a(valu("v_xor_b32", voffK, sT2, E))
    a(valu("v_add_u32", voffK, sW3072, voffK))
    Eo = T[8]
    a(valu("v_xor_b32", Eo, 64, E))
    a(valu("v_lshlrev_b32", T[9], 1, rh))
    a(valu("v_xor_b32", T[9], T[9], j8))
    a(valu("v_lshl_add_u32", voffV, T[9], 4, r384))
    a(valu("v_add_u32", voffV, sW3072, voffV))
    a(salu("s_mul_i32", sT3, sW, 24576, scc=False))
    a(salu("s_lshr_b32", sT2, sW, 1))
    a(salu("s_mul_i32", sT2, sT2, 6144, scc=False))
    a(wait(lgkm=0))
    for srd, lo, off, sz in ((srdK, 6, sT1, 196608), (srdQ, 4, sT0, 110592), (srdV, 8, sT1, 196608),
                             (srdO, 10, sT0, 110592)):
        a(salu("s_add_u32", srd[0], S(lo), off))
        a(salu("s_addc_u32", srd[1], S(lo + 1), 0, rd_scc=True))
        a(smov(srd[2], sz))
        a(smov(srd[3], 0x20000))
    if cfg.stamps:
        a(smov(srdW[2], 256 if cfg.dbg else 0x10000000))
        a(smov(srdW[3], 0x20000))
        a(raw(f"s_memrealtime {sST}", "smem", [], sST.names()))
        a(wait(lgkm=0))
        a(raw(f"v_writelane_b32 {X1}, {sST[0]}, 62", "valu", sST[0].names() + X1.names(), X1.names()))
    pro += stamp()

    def issue(pairs, lab, setg):
        for k, (m, d) in enumerate(pairs):
            a(m)
            if k == 0:
                a(setg)
            a(d)
            vmq.append(lab)

    def vmwait(*labs):
        last = max(i for i, l in enumerate(vmq) if l in labs)
        return len(vmq) - 1 - last

    def ldK(u):
        issue(dma3(voffK, srdK, sG, sW3072, (u % 6) * SLOT), f"K{u}", smov(sG, u * SLOT))

    def ldV(u):
        issue(dma3(voffV, srdV, sG, sW3072, VRING + ((u + 1) % 6) * SLOT), f"V{u}", smov(sG, u * SLOT))

    QORD = [X, 0, 1, 2, 3]
    D = cfg.D

    def ldQ(t, i):
        setg = salu("s_add_u32", sG, sT3, (2 * t + i) * 3072)
        issue(dma3(Eo if i else E, srdQ, sG, sW3072, (2 + t + 6 * i) * SLOT), f"Q{t}", setg)

    def ldX():
        issue(dma3(voffK, srdQ, sG, sW3072, 12 * SLOT), f"Q{X}", smov(sG, 256 * 384))

    dq = [(lambda: ldK(0), None), (ldX, None)]
    for t in range(4):
        dq += [(lambda t=t: ldQ(t, 0), None), (lambda t=t: ldQ(t, 1), None)]
    for g in range(D):
        need = g - 1 if 1 <= g <= 4 else None
        dq += [(lambda g=g: ldK(g + 1), need), (lambda g=g: ldV(g), need)]
    consumed = set()

    def pump(k):
        for _ in range(k):
            if dq:
                fn, need = dq[0]
                assert need is None or need in consumed, need
                dq.pop(0)
                fn()

    if cfg.xdelay:
        a(smov(sU, cfg.xdelay))
        a(label("L_spin"))
        a(nop(13))
        a(salu("s_sub_u32", sU, sU, 1))
        a(scmp("s_cmp_lg_u32", sU, 0))
        a(branch("s_cbranch_scc1", "L_spin", ["scc"]))
    if cfg.xload:
        a(raw("s_load_dwordx2 s[28:29], s[0:1], 40", "smem", [], ["s28", "s29"]))
        a(smov(srdW[2], 0x10000000))
        a(smov(srdW[3], 0x20000))
        a(salu("s_mul_i32", sG, S(2), cfg.xload * SLOT, scc=False))
        a(smov(sU, cfg.xload))
        a(wait(lgkm=0))
        a(label("L_xl"))
        for m_, d_ in dma3(voffK, srdW, sG, sW3072, 0):
            a(m_)
            a(d_)
        a(salu("s_add_u32", sG, sG, SLOT))
        a(salu("s_sub_u32", sU, sU, 1))
        a(scmp("s_cmp_lg_u32", sU, 0))
        a(branch("s_cbranch_scc1", "L_xl", ["scc"]))
        a(wait(vm=0))
    pump(4)
    a(smov(sC2[0], f32bits(CSCALE)))
    a(smov(sC2[1], f32bits(CSCALE)))
    a(smov(sTHR, f32bits(cfg.thr)))
    a(smov(sPOS, SLOT))
    a(smov(sD, SLOT))
    a(smov(sU, 0))
    a(salu("s_add_u32", sDMA, sW3072, ((D + 1) % 6) * SLOT))
    r16, cg, t1, t2 = T[10], T[11], T[12], T[13]
    a(valu("v_and_b32", r16, 15, vL))
    a(valu("v_lshrrev_b32", cg, 4, vL))
    a(valu("v_and_b32", t1, 7, r16))
    a(valu("v_lshlrev_b32", t1, 7, t1))
    a(valu("v_lshrrev_b32", t2, 1, r16))
    a(valu("v_xor_b32", t2, t2, cg))
    a(valu("v_lshl_add_u32", t1, t2, 4, t1))
    a(valu("v_lshrrev_b32", t2, 3, r16))
    a(valu("v_mul_u32_u24", vK[0], 3072, t2))
    a(valu("v_add_u32", vK[0], vK[0], t1))
    a(valu("v_xor_b32", vK[1], 64, vK[0]))
    vQs = [T[14], T[15], T[16], T[17]]
    a(valu("v_mul_u32_u24", vQs[0], 6 * SLOT, t2))
    a(valu("v_add_u32", vQs[0], vQs[0], t1))
    a(salu("s_add_u32", sT0, sW3072, 2 * SLOT))
    a(valu("v_add_u32", vQs[0], sT0, vQs[0]))
    a(valu("v_xor_b32", vQs[1], 64, vQs[0]))
    a(salu("s_add_u32", sT0, sT2, 12 * SLOT))
    a(valu("v_add_u32", vQs[2], sT0, vK[0]))
    a(valu("v_add_u32", vQs[3], sT0, vK[1]))
    a(valu("v_bfe_u32", t1, vL, 2, 3))
    a(valu("v_lshlrev_b32", t2, 7, t1))
    a(valu("v_lshrrev_b32", t1, 1, t1))
    a(valu("v_lshl_add_u32", t2, t1, 5, t2))
    a(valu("v_and_b32", t1, 3, vL))
    a(valu("v_lshl_add_u32", t2, t1, 3, t2))
    a(valu("v_lshrrev_b32", t1, 5, vL))
    a(valu("v_mul_u32_u24", t1, 3072, t1))
    a(valu("v_add_u32", t2, t2, t1))
    a(valu("v_add_u32", vV[0], VRING + SLOT, t2))
    for i in range(1, 4):
        a(valu("v_xor_b32", vV[i], i << 5, vV[0]))
    Z = V(TE[0].i, 4)
    for i in range(4):
        a(valu("v_mov_b32", Z[i], 0))
    for t in range(5):
        a(valu("v_mov_b32", L[t], 0))
    for g in [V(64 + 16 * i, 16) for i in range(4)] + [A(120 + 16 * i, 16) for i in range(7)]:
        a(mfma32(g, Z, Z, 0))
    KF = ([S1["a"][2][0:4], S1["a"][2][4:8], S1["a"][3][0:4], S1["a"][3][4:8], P0["b"][0], P0["b"][1], P1[2], P1[3]]
          + F[2:6])
    pump(cfg.lead - 4)
    a(wait(vm=vmwait("K0", f"Q{X}")))
    a(barrier())
    pro += stamp()
    RAW = [V(4 * i, 4) for i in range(6)]
    UT = [V(24 + 2 * i, 2) for i in range(4)]
    Sdst = {0: S0[0], 1: S0[1], X: SX, 2: S1["b"][2], 3: S1["b"][3]}
    for t in QORD:
        if t != X:
            pro.extend(stamp())
            a(wait(vm=vmwait(f"Q{t}")))
            pro.extend(stamp())
        for ks in range(6):
            if t == X:
                a(dsr128(RAW[ks], vQs[2 + ks % 2], (ks // 2) * 1024))
            else:
                a(dsr128(RAW[ks], vQs[ks % 2], t * SLOT + (ks // 2) * 1024))
        if t == X:
            for i in range(12):
                a(kfrag(i, KF[i]))
            for i in range(2):
                a(valu("v_add_u32", vK[i], sPOS, vK[i]))
        pump(1)
        for ks in range(6):
            for r in range(4):
                u2 = UT[r]
                a(valu("v_lshlrev_b32", u2[0], 16, RAW[ks][r]))
                a(valu("v_and_b32", u2[1], 0xFFFF0000, RAW[ks][r]))
            for r in range(4):
                a(valu("v_pk_mul_f32", UT[r], UT[r], sC2))
            for r in range(4):
                a(valu("v_cvt_pk_bf16_f32", UT[r][0], UT[r][0], UT[r][1]))
            for r in range(4):
                a(valu("v_accvgpr_write_b32", Q[t][ks][r], UT[r][0]))
            if ks >= 1:
                for kt in range(2):
                    Dd = Sdst[t][4 * kt:4 * kt + 4]
                    a(mfma16(Dd, KF[6 * kt + ks - 1], Q[t][ks - 1], 0 if ks == 1 else Dd))
        consumed.add(t)
        for kt in range(2):
            Dd = Sdst[t][4 * kt:4 * kt + 4]
            a(mfma16(Dd, KF[6 * kt + 5], Q[t][5], Dd))
        pump(1)
        if t == QORD[-1]:
            for i in range(4):
                a(valu("v_mov_b32", Z[i], 0))
            for g in [V(16 * i, 16) for i in range(2)]:
                a(mfma32(g, Z, Z, 0))
        m_, tt_ = TE[4], TE[5]
        pro += rowmax8(Sdst[t], m_, tt_)
        for i in range(8):
            a(valu("v_sub_f32", Sdst[t][i], Sdst[t][i], m_))
        for i in range(4):
            a(valu("v_sub_f32", NM[t][i], 0, m_))
        if t in (0, 1):
            pro += sm_tile(S0[t], P0["a"][t], L[t])
        if t == X:
            pro += sm_half(SX, PX, 0, PSX, True)
    pro += stamp()
    a(wait(vm=vmwait("K1", "V0")))
    a(barrier())
    pro += stamp()
    a(kfrag(0, F[0]))
    a(kfrag(1, F[1]))
    pump(100)
    assert vmwait("K1", "V0") == 6 * (D - 1)
    for g in [V(32 + 16 * i, 16) for i in range(2)]:
        a(mfma32(g, Z, Z, 0))
    a(valu("v_add_u32", voffK, SLOT, voffK))
    a(smov(sG, D * SLOT))
    a(scmp("s_cmp_lg_u32", sWodd, 0))
    a(branch("s_cbranch_scc1", "L_enterB", ["scc"]))
    pro, pend = finalize2(pro, log=logs)
    assert pend[-2:] == ENTRY_PEND, pend
    proB = [label("L_enterB")]
    for t in (2, 3):
        for i in range(8):
            proB.append(valu("v_mov_b32", S1["a"][t][i], S1["b"][t][i]))
    for t in (0, 1):
        for i in range(4):
            proB.append(valu("v_mov_b32", P0["b"][t][i], P0["a"][t][i]))
    proB.append(branch("s_branch", "L_B"))
    proB, _ = finalize2(proB, hist=pro[-30:], log=logs)

    slow_blocks = []

    def slow(name, ret, items):
        o = [label(name), nop(16)]
        for t, Sr, Pr, ps, Sn in items:
            d, f, tmp = TE[0], TE[1], TE[2]
            o += rowmax8(Sr, d, tmp)
            o.append(valu("v_max_f32", d, 0, d))
            o.append(valu("v_sub_f32", f, 0, d))
            o.append(trans("v_exp_f32", f, f))
            for i in range(4):
                o.append(valu("v_sub_f32", NM[t][i], NM[t][i], d))
            for i in range(8):
                o.append(valu("v_sub_f32", Sr[i], Sr[i], d))
            if Sn is not None:
                for i in range(8):
                    o.append(valu("v_sub_f32", Sn[i], Sn[i], d))
            o.append(valu("v_mul_f32", L[t], f, L[t]))
            for g in O[t]:
                for i in range(4):
                    r = g[i]
                    if r.f == "v":
                        o.append(valu("v_mul_f32", r, f, r))
                    else:
                        tq = TE[2 + i % 2]
                        o.append(valu("v_accvgpr_read_b32", tq, r))
                        o.append(valu("v_mul_f32", tq, f, tq))
                        o.append(valu("v_accvgpr_write_b32", r, tq))
            o += sm_tile(Sr, Pr, ps)
        o.append(nop(4))
        o.append(branch("s_branch", ret))
        o, _ = finalize2(o)
        slow_blocks.append(o)

    def chk(pss):
        t = TE[tctr[0] % len(TE)]
        tctr[0] += 1
        o = [valu("v_max3_f32", t, *pss) if len(pss) == 3 else valu("v_max_f32", t, *pss)]
        o.append(valu("v_cmp_lt_f32", "vcc", sTHR, t))
        return o

    def block(B):
        isA = B == "A"
        sw, sr = ("a", "b") if isA else ("b", "a")
        pr, pw = ("a", "b") if isA else ("b", "a")
        Sw = {0: S0[0], 1: S0[1], 2: S1[sw][2], 3: S1[sw][3], X: SX}
        Pr = {0: P0[pr][0], 1: P0[pr][1], 2: P1[2], 3: P1[3], X: PX}
        qt = [0, 1, 2, 3] + ([] if isA else [X])
        pt = [0, 1, 2, 3] + ([X] if isA else [])
        mf, kpos, kend, last = [], {}, {}, {}
        for i in range(12):
            kt, ks = i // 6, i % 6
            kpos[i] = len(mf)
            for t in qt:
                Dd = Sw[t][4 * kt:4 * kt + 4]
                last[(t, kt)] = len(mf)
                mf.append(mfma16(Dd, F[i % 3], Q[t][ks], NM[t] if ks == 0 else Dd))
            kend[i] = len(mf)
        nq = len(mf)
        vb = lambda db: [F[3], F[4], F[5], F[2]][db % 4]
        vpos, vend = {}, {}
        for db in range(12):
            vpos[db] = len(mf)
            for t in pt:
                mf.append(mfma16(O[t][db], vb(db), Pr[t], O[t][db]))
            vend[db] = len(mf)
        n = len(mf)
        sc = Sched(mf)
        gb = n - cfg.barback
        for i in range(1, 12):
            sc.wres[kpos[i]] = True
        for db in range(12):
            if vpos[db] < gb:
                sc.wres[vpos[db]] = True
        assert not sc.wres[gb]
        sc.wres[n] = True
        sc.put_vec_from(1, [kfrag(2, F[2])])
        for i in range(3, 12):
            sc.put_vec_from(kend[i - 3], [kfrag(i, F[i % 3])])
        for db in range(3):
            sc.put_vec_from(kpos[9 + db] + 1, vfrag(db, vb(db)))
        sc.put_vec_from(nq, vfrag(3, vb(3)))
        gl = 0
        for db in range(4, 12):
            gl = sc.put_vec_from(vend[db - 4], vfrag(db, vb(db)))
        assert gl < gb
        if cfg.inner == 1:
            sc.put_sc(gb, *stamp())
        sc.put_sc(gb, wait(vm=6 * (D - 1), lgkm=0), barrier())
        if cfg.inner == 1:
            sc.put_sc(gb, *stamp())
        if cfg.inner == 2 and cfg.stamps:
            st_ = stamp()
            sc.put_sc(gb, st_[1], st_[4], st_[3], st_[0])
        sc.put_vec_from(gb, [kfrag(0, F[0]), kfrag(1, F[1])])
        dmask = sum(1 << u for u in range(32) if (u + D + 1) % 6 == 5)
        g = sc.put_sc_from(1, [scmp("s_bitcmp1_b32", 0x10410, sU),
                               salu("s_cselect_b32", sD, (-5 * SLOT) & 0xFFFFFFFF, sPOS, scc=False, rd_scc=True),
                               scmp("s_bitcmp1_b32", dmask, sU),
                               salu("s_cselect_b32", sDo, (-5 * SLOT) & 0xFFFFFFFF, sPOS, scc=False, rd_scc=True)])
        dm = dma3(voffK, srdK, sG, sDMA, 0) + dma3(voffV, srdV, sG, sDMA, VRING)
        d0, d1 = (nq + 4, gb - 6) if isA else (g + 2, nq - 16)
        for k, (m_, d_) in enumerate(dm):
            g = d0 + (d1 - d0) * k // 5
            while not (sc.sc_free(g) and sc.free(g + 1) >= 2):
                g += 1
            sc.put_sc(g, m_)
            sc.put_vec(g + 1, d_)
        assert g + 1 < gb
        g = sc.put_sc_from(g + 2, [salu("s_add_u32", sDMA, sDMA, sDo), salu("s_add_u32", sG, sG, SLOT),
                                   scmp("s_cmp_ge_u32", sU, 15 - D),
                                   salu("s_cselect_b32", sDMA, LDS_BYTES, sDMA, scc=False, rd_scc=True),
                                   salu("s_add_u32", sU, sU, 1)], gmax=n - 4)
        gc1 = nq + 2
        assert sc.sc_free(gc1)
        sc.put_sc(gc1, branch("s_cbranch_vccnz", f"L_slow1{B}", ["vcc"]), label(f"L_ret1{B}"))
        gc0 = n - 2
        assert sc.sc_free(gc0) and gc0 >= vpos[11] + 2
        sc.put_sc(gc0, branch("s_cbranch_vccnz", f"L_slow0{B}", ["vcc"]), label(f"L_ret0{B}"))
        sc.put_vec(gc0, valu("v_add_f32", L[0], L[0], PS[0]), valu("v_add_f32", L[1], L[1], PS[1]))
        assert sc.sc_free(n - 1)
        sc.put_sc(n - 1, scmp("s_cmp_eq_u32", sU, 15))
        sc.tail[n].append(branch("s_cbranch_scc1", "L_tailB" if isA else "L_tailA", ["scc"]))
        if not isA:
            sc.tail[n].append(branch("s_branch", "L_A"))
        st1 = sm_tile(S1[sr][2], P1[2], PS[0]) + sm_tile(S1[sr][3], P1[3], PS[1])
        if isA:
            st1 += sm_half(SX, PX, 1, PSX, False) + chk([PS[0], PS[1], PSX])
        else:
            st1 += chk([PS[0], PS[1]]) + sm_half(SX, PX, 0, PSX, True, last[(X, 0)] + 5)
        e1, x1 = sc.fill(st1, 1, gc1 - 1, name=f"{B}.st1")
        items = [(t, S1[sr][t], P1[t], PS[t - 2], S1[sw][t]) for t in (2, 3)]
        if isA:
            items.append((X, SX, PX, PSX, None))
        slow(f"L_slow1{B}", f"L_ret1{B}", items)
        st0 = [valu("v_add_f32", L[2], L[2], PS[0]), valu("v_add_f32", L[3], L[3], PS[1])]
        if isA:
            st0.append(valu("v_add_f32", L[X], L[X], PSX))
        st0 += [valu("v_add_u32", x, sD, x) for x in vK]
        st0 += sm_tile(S0[0], P0[pw][0], PS[0]) + sm_tile(S0[1], P0[pw][1], PS[1]) + chk([PS[0], PS[1]])
        adv = [valu("v_add_u32", x, sD, x) for x in vV]
        sc.put_vec_from(n - 1, adv[0:2])
        for i in adv[2:4]:
            i.earliest = gl + 1
        e0, x0 = sc.fill(st0 + adv[2:4], gc1, gc0 - 1, name=f"{B}.st0")
        slow(f"L_slow0{B}", f"L_ret0{B}", [(t, S0[t], P0[pw][t], PS[t], None) for t in (0, 1)])
        logs.append(f"block {B}: st1 ends gap {e1}/{gc1 - 1} (+{x1} overfull), st0 ends {e0}/{gc0 - 1} (+{x0})")
        seq = [label(f"L_{B}")] + sc.emit()
        k = max(i for i, x in enumerate(seq) if x.kind in MFMA_KINDS)
        seq.insert(k + 1, wait(lgkm=1))
        out, pend = finalize2(seq, pend=ENTRY_PEND[1:], log=logs)
        assert pend[-1:] == ENTRY_PEND[1:], pend
        return out

    blkA = block("A")
    blkB = block("B")
    pro[-2:-2] = [wait(lgkm=1)]

    VF = [A(4 * db, 4) for db in range(12)]

    def tail(B):
        isA = B == "A"
        sr, sd = ("b", "a") if isA else ("a", "b")
        pr, pd = ("a", "b") if isA else ("b", "a")
        free = [S0[0][i] for i in range(8)] + [S0[1][i] for i in range(8)]
        lane, q16, gq, t1, t2, t3 = free[0:6]
        INV = {0: V(free[6].i, 2), 1: V(free[8].i, 2), 2: V(free[6].i, 2), 3: V(free[8].i, 2)}
        wa = free[10:14]
        ra, so = free[14], free[15]
        f2 = [S1[sd][2][i] for i in range(8)] + [S1[sd][3][i] for i in range(8)]
        TMP = [V(f2[4 * i].i, 4) for i in range(2)]
        xw, xr, ma = f2[8], f2[9], f2[10]
        ml = V(f2[12].i, 2)
        MLo = [V(P0[pd][0].i, 2), V(P0[pd][0].i + 2, 2)]
        W = []
        a = W.append
        ready = []

        def inv_of(t):
            return allrows("v_add_f32", L[t], t1) + [trans("v_rcp_f32", INV[t][0], L[t])]

        def epi(t, db):
            o = []
            g = O[t][db]
            src = g
            if g.f == "a":
                src = TMP[db % 2]
                for i in range(4):
                    o.append(valu("v_accvgpr_read_b32", src[i], g[i]))
            o.append(valu("v_pk_mul_f32", src[0:2], src[0:2], INV[t], extra="op_sel_hi:[1,0]"))
            o.append(valu("v_pk_mul_f32", src[2:4], src[2:4], INV[t], extra="op_sel_hi:[1,0]"))
            o.append(valu("v_cvt_pk_bf16_f32", src[0], src[0], src[1]))
            o.append(valu("v_cvt_pk_bf16_f32", src[1], src[2], src[3]))
            o.append(dsw64(wa[db % 4], src[0:2], t * 6144 + (db // 4) * 128))
            return o

        DREG = {0: lambda ln, hf: V(16 * ln + 4 * hf, 4), 1: lambda ln, hf: V(48 + 16 * ln + 4 * hf, 4),
                2: lambda ln, hf: V(16 * ln + 8 + 4 * hf, 4), 3: lambda ln, hf: V(48 + 16 * ln + 8 + 4 * hf, 4)}

        def line_out(t, ln):
            o = []
            for hf in range(2):
                off = t * 6144 + hf * 3072 + ln * 128
                d = DREG[t](ln, hf)
                o.append(dsr128(d, ra, off))
                st_ = vstore(d, so, srdO, sT3, off & 4095, cfg.st)
                o.append(("store", [smov(sT3, off & ~4095)] + ([] if cfg.nostore else [st_])))
            return o

        def tile_out(t, mf=()):
            mf = list(mf)
            o = []
            for db in range(12):
                e = epi(t, db)
                if mf:
                    o.append(mf.pop(0))
                o += e[:3]
                if mf and len(mf) > 12 - db:
                    o.append(mf.pop(0))
                o += e[3:]
                if db % 4 == 3:
                    o += line_out(t, db // 4)
            return o + mf

        def pv(t, P):
            return [mfma16(O[t][db], VF[db], P, O[t][db]) for db in range(12)]

        W += stamp()
        for db in range(6):
            W += vfrag(db, VF[db])
        a(valu("v_mbcnt_lo_u32_b32", lane, -1, 0))
        a(valu("v_mbcnt_hi_u32_b32", lane, -1, lane))
        a(valu("v_mov_b32", t1, L[0]))
        a(valu("v_and_b32", q16, 15, lane))
        a(valu("v_lshrrev_b32", gq, 4, lane))
        a(swap16(L[0], t1))
        a(valu("v_add_f32", L[0], L[0], t1))
        a(salu("s_mul_i32", sT0, sW, 24576, scc=False))
        a(valu("v_mov_b32", t1, L[0]))
        a(valu("v_mul_u32_u24", t2, 384, q16))
        a(valu("v_and_b32", t3, 7, q16))
        a(swap32(L[0], t1))
        a(valu("v_add_f32", L[0], L[0], t1))
        a(valu("v_lshrrev_b32", t1, 1, gq))
        a(trans("v_rcp_f32", INV[0][0], L[0]))
        m0 = pv(0, P0[pr][0])
        rest = [valu("v_xor_b32", t3, t3, t1), valu("v_lshl_add_u32", t2, t3, 4, t2), valu("v_and_b32", t3, 1, gq),
                valu("v_lshl_add_u32", t2, t3, 3, t2), valu("v_add_u32", wa[0], sT0, t2)]
        rest += [valu("v_xor_b32", wa[i], i << 5, wa[0]) for i in range(1, 4)]
        rest += [valu("v_lshrrev_b32", t1, 3, lane), valu("v_and_b32", t2, 7, lane),
                 valu("v_mul_u32_u24", t3, 384, t1), valu("v_add_u32", t3, sT0, t3),
                 valu("v_lshl_add_u32", so, t2, 4, t3), valu("v_xor_b32", t2, t2, t1),
                 valu("v_lshl_add_u32", ra, t2, 4, t3)]
        vr = []
        for db in range(6, 12):
            vr += vfrag(db, VF[db])
        for k in range(6):
            a(m0[k])
            W += vr[2 * k:2 * k + 2]
            W += rest[3 * k:3 * k + 3]
        W += tile_out(0, m0[6:] + pv(1, P0[pr][1]))
        W += stamp() if cfg.tstamps else []
        W += inv_of(1)
        W += tile_out(1)
        W += stamp() if cfg.tstamps else []
        sm = []
        if isA:
            sm += sm_half(SX, PX, 1, PSX, False)
        sm += sm_tile(S1[sr][2], P1[2], PS[0]) + sm_tile(S1[sr][3], P1[3], PS[1])
        sm += chk([PS[0], PS[1], PSX] if isA else [PS[0], PS[1]])
        W += sm
        W += [branch("s_cbranch_vccnz", f"L_slowT{B}", ["vcc"]), label(f"L_retT{B}"),
              valu("v_add_f32", L[2], L[2], PS[0]), valu("v_add_f32", L[3], L[3], PS[1])]
        items = [(t, S1[sr][t], P1[t], PS[t - 2], None) for t in (2, 3)]
        if isA:
            a(valu("v_add_f32", L[X], L[X], PSX))
            items.append((X, SX, PX, PSX, None))
        slow(f"L_slowT{B}", f"L_retT{B}", items)
        W += stamp() if cfg.tstamps else []
        m2 = pv(2, P1[2])
        i2 = inv_of(2)
        xs = [salu("s_lshr_b32", sT1, sW, 1), salu("s_mul_i32", sT2, sT1, 3 * SLOT, scc=False),
              salu("s_add_u32", sT2, sT2, 8 * SLOT + (SLOT if isA else 0)), valu("v_lshl_add_u32", xw, lane, 4, sT2),
              valu("v_add_u32", xr, (6144 - SLOT) if isA else 0, xw),
              salu("s_lshl_b32", sT2, sT1, 8), salu("s_add_u32", sT2, sT2, MLBASE),
              valu("v_lshl_add_u32", ma, q16, 3, sT2)]
        fl = i2 + xs
        for k in range(6):
            a(m2[k])
            W += fl[3 * k:3 * k + 3]
        W += tile_out(2, m2[6:] + (pv(X, PX) if isA else []) + pv(3, P1[3]))
        W += stamp() if cfg.tstamps else []
        for db in range(12):
            a(dsw128(xw, O[X][db], db * 1024))
        W += allrows("v_add_f32", L[X], t1)
        a(valu("v_mov_b32", ml[0], NM[X][0]))
        a(valu("v_mov_b32", ml[1], L[X]))
        a(dsw64(ma, ml, 128 if isA else 0))
        W += stamp() if cfg.tstamps else []
        W += inv_of(3)
        W += tile_out(3)
        W += stamp() if cfg.tstamps else []
        a(wait(lgkm=0))
        a(barrier())
        W += stamp() if cfg.tstamps else []
        XS = [[V(96 + 4 * k, 4) for k in range(6)], [V(S1[sr][2].i + 4 * k, 4) for k in range(4)] + [P1[2], P1[3]]]
        for s_ in range(2):
            a(dsr64(MLo[s_], ma, s_ * 128))
        for s_ in range(2):
            for k in range(6):
                a(dsr128(XS[s_][k], xr, s_ * SLOT + k * 1024))
        a(valu("v_min_f32", t1, MLo[0][0], MLo[1][0]))
        for s_ in range(2):
            a(valu("v_sub_f32", MLo[s_][0], t1, MLo[s_][0]))
        for s_ in range(2):
            a(trans("v_exp_f32", MLo[s_][0], MLo[s_][0]))
        a(valu("v_mul_u32_u24", t3, 384, q16))
        a(valu("v_mul_f32", t2, MLo[0][0], MLo[0][1]))
        a(valu("v_fma_f32", t2, MLo[1][0], MLo[1][1], t2))
        a(trans("v_rcp_f32", t2, t2))
        a(valu("v_and_b32", t1, 1, gq))
        a(valu("v_lshl_add_u32", t3, t1, 5, t3))
        a(valu("v_lshrrev_b32", t1, 1, gq))
        a(valu("v_lshl_add_u32", t3, t1, 4, t3))
        for s_ in range(2):
            a(valu("v_mul_f32", MLo[s_][0], MLo[s_][0], t2))
        a(salu("s_mul_i32", sT1, sT1, 6144, scc=False))
        a(salu("s_add_u32", sT1, sT1, 256 * 384 + (192 if isA else 0)))
        for kp in range(3):
            for k in (2 * kp, 2 * kp + 1):
                for h in range(2):
                    x0, x1 = XS[0][k][2 * h:2 * h + 2], XS[1][k][2 * h:2 * h + 2]
                    a(valu("v_pk_mul_f32", x0, x0, MLo[0], extra="op_sel_hi:[1,0]"))
                    a(valu("v_pk_fma_f32", x0, x1, MLo[1], x0, extra="op_sel_hi:[1,0,1]"))
            dq = XS[1][2 * kp]
            g0, g1 = XS[0][2 * kp], XS[0][2 * kp + 1]
            a(valu("v_cvt_pk_bf16_f32", dq[0], g0[0], g0[1]))
            a(valu("v_cvt_pk_bf16_f32", dq[2], g1[0], g1[1]))
            a(valu("v_cvt_pk_bf16_f32", dq[1], g0[2], g0[3]))
            a(valu("v_cvt_pk_bf16_f32", dq[3], g1[2], g1[3]))
            a(swap16(dq[0], dq[2]))
            a(swap16(dq[1], dq[3]))
            a(vstore(dq, t3, srdO, sT1, kp * 64, cfg.stx))
        seq = [label(f"L_tail{B}")]
        pendst = []
        for it in W:
            if isinstance(it, tuple):
                pendst.append([cfg.sdist, it[1]])
                continue
            if it.kind in ("bar", "br") or (it.kind == "salu" and sT3.names()[0] in it.wr):
                pass
            seq.append(it)
            for p in pendst:
                p[0] -= 1
            if pendst and pendst[0][0] <= 0 and it.kind != "br":
                seq += pendst.pop(0)[1]
                for p in pendst:
                    p[0] = max(p[0], cfg.sgap)
        for p in pendst:
            seq += p[1]
        a = seq.append
        if cfg.stamps:
            seq += stamp()
            a(wait(vm=0))
            seq += stamp()
            a(raw(f"s_memrealtime {sST}", "smem", [], sST.names()))
            a(wait(lgkm=0))
            a(raw(f"v_writelane_b32 {X1}, {sST[0]}, 63", "valu", sST[0].names() + X1.names(), X1.names()))
            a(salu("s_lshl_b32", sT2, S(2), 2))
            a(salu("s_add_u32", sT2, sT2, sW))
            a(salu("s_lshl_b32", sT2, sT2, 8))
            a(valu("v_lshlrev_b32", t1, 2, lane))
            a(vstore(X1, t1, srdW, sT2, 0, "", op="buffer_store_dword"))
        if isA:
            a(label("L_end"))
        a(raw("s_endpgm", "br"))
        out, pend = finalize2(seq, pend=ENTRY_PEND[1:], hist=(blkB if isA else blkA)[-30:], log=logs)
        return out

    tailB = tail("B")
    tailA = tail("A")
    fin = []

    for blk in (pro, blkA, blkB, tailA, tailB, fin):
        lastw = None
        for i in blk:
            if "scc" in i.rd:
                ok = lastw is not None and (lastw.txt.startswith("s_cmp") or lastw.txt.startswith("s_bitcmp")
                                            or i.txt.startswith("s_addc"))
                assert ok, (lastw, i)
            if "scc" in i.wr:
                lastw = i
    bad = 0
    bad += check_path("pro-A-B", pro, blkA, blkB, blkA)
    bad += check_path("pro-B-A", pro, proB, blkB, blkA, blkB)
    bad += check_path("A-tailB-fin", blkA, tailB, fin)
    bad += check_path("B-tailA-fin", blkB, tailA, fin)
    assert bad == 0
    info = dict(A=est16(blkA), B=est16(blkB), nA=len(blkA), nB=len(blkB), pro=est16(pro),
                tailA=est16(tailA), tailB=est16(tailB), fin=est16(fin))

    body = pro + blkA + blkB + proB + tailB + tailA + fin
    for o in slow_blocks:
        body += o
    hdr = f"""; Flash-style attention forward, one workgroup (4 waves, one per SIMD, 512 registers) per (batch, head).
; Softmax: running reference max per row (true max of the keys seen when it was last set); every 32-key unit is
; checked and falls back to a rescale with the true running max when the partial sum leaves the safe range.
; @launch grid=(256,1,1) block=(256,1,1) lds={LDS_BYTES}
.amdgcn_target "amdgcn-amd-amdhsa--gfx950"
.text
.globl {KN}
.p2align 8
.type {KN},@function
{KN}:
"""
    ftr = f"""
.section .rodata,"a"
.p2align 6
.amdhsa_kernel {KN}
  .amdhsa_next_free_vgpr 512
  .amdhsa_next_free_sgpr 64
  .amdhsa_accum_offset 256
  .amdhsa_group_segment_fixed_size 0
  .amdhsa_kernarg_size 48
  .amdhsa_user_sgpr_count 2
  .amdhsa_user_sgpr_kernarg_segment_ptr 1
  .amdhsa_system_sgpr_workgroup_id_x 1
  .amdhsa_float_denorm_mode_32 3
.end_amdhsa_kernel
"""
    txt = hdr + "\n".join(("" if i.kind == "label" else "    ") + i.txt for i in body) + ftr
    return txt, info, logs


if __name__ == "__main__":
    out = sys.argv[1]
    cfg = Cfg()
    for kv in sys.argv[2:]:
        k, v = kv.split("=")
        cur = getattr(cfg, k)
        if isinstance(cur, bool):
            v = v in ("1", "true", "True")
        elif isinstance(cur, (int, float)):
            v = type(cur)(float(v))
        setattr(cfg, k, v)
    txt, info, logs = gen(cfg)
    open(out, "w").write(txt)
    print(info)
    for l in logs:
        if cfg.verbose or not l.startswith("pad"):
            print("  ", l)
```

```python
import sys, struct, math
from asmlib import *

KN = "standalone__gqa_softmax__near_ridge_kernel"
SLOT = 12288
VRING = 6 * SLOT
MLBASE = 13 * SLOT
LDS_BYTES = 163840
CSCALE = 192 ** -0.5 * math.log2(math.e)


def f32bits(x):
    return struct.unpack("<I", struct.pack("<f", x))[0]


X = 4
O = {0: [V(4 * d, 4) for d in range(12)],
     1: [V(48 + 4 * d, 4) for d in range(12)],
     2: [V(96 + 4 * d, 4) for d in range(8)] + [A(216 + 4 * d, 4) for d in range(4)],
     3: [A(168 + 4 * d, 4) for d in range(12)],
     X: [A(120 + 4 * d, 4) for d in range(12)]}
S0 = {0: V(128, 8), 1: V(136, 8)}
SX = V(144, 8)
S1 = {"a": {2: V(152, 8), 3: V(160, 8)}, "b": {2: V(168, 8), 3: V(176, 8)}}
P0 = {"a": {0: V(184, 4), 1: V(188, 4)}, "b": {0: V(192, 4), 1: V(196, 4)}}
P1 = {2: V(200, 4), 3: V(204, 4)}
PX = V(208, 4)
NM = {t: V(212 + 4 * t, 4) for t in range(5)}
L = {t: V(232 + t) for t in range(5)}
vK = [V(237), V(238)]
vV = [V(239 + i) for i in range(4)]
voffK, voffV = V(243), V(244)
PS = [V(245), V(246)]
PSX = V(247)
TE = [V(248 + i) for i in range(6)]
X1 = V(255)
Q = {t: [A(24 * t + 4 * ks, 4) for ks in range(6)] for t in range(5)}
F = [A(232 + 4 * i, 4) for i in range(6)]

srdQ, srdK, srdV, srdO, srdW = S(12, 4), S(16, 4), S(20, 4), S(24, 4), S(28, 4)
sW, sTHR, sU, sG, sDMA, sD, sDo, sPOS = S(32), S(33), S(34), S(35), S(36), S(37), S(38), S(39)
sT0, sT1, sT2, sT3 = S(40), S(41), S(42), S(43)
sW3072, sWodd = S(44), S(45)
sC2 = S(46, 2)
sST = S(50, 2)
sSI = S(52)


class Cfg:
    ld = "nt"
    st = ""
    stamps = False
    rt = False
    thr = 2.0 ** 24
    barback = 9
    verbose = False
    xnop = 0
    tstamps = False
    nostore = False
    stx = ""
    sdist = 12
    sgap = 6
    xdelay = 0
    xload = 0
    dbg = False
    inner = 1
    dlate = 0
    pref = True
    align8 = False
    apad = 0
    D = 3
    lead = 5


def gen(cfg):
    logs = []

    def dma3(voff, srd, soff, base_sreg, const):
        return [[salu("s_add_u32", "m0", base_sreg, const + t * 896), dma(voff, srd, soff, t * 128, cfg.ld)]
                for t in range(3)]

    tctr = [0]

    def sm_half(Sr, Pr, kt, ps, first, earliest=0):
        out = []
        tt = []
        for e in range(4):
            t = TE[tctr[0] % len(TE)]
            tctr[0] += 1
            tt.append(t)
            i = trans("v_exp_f32", t, Sr[4 * kt + e])
            i.earliest = earliest
            out.append(i)
            if e == 1:
                out.append(valu("v_add_f32", ps, tt[0], tt[1]) if first else valu("v_add_f32", ps, ps, tt[0]))
                if not first:
                    out.append(valu("v_add_f32", ps, ps, tt[1]))
                out.append(valu("v_cvt_pk_bf16_f32", Pr[2 * kt], tt[0], tt[1]))
            if e == 3:
                out.append(valu("v_add_f32", ps, ps, tt[2]))
                out.append(valu("v_add_f32", ps, ps, tt[3]))
                out.append(valu("v_cvt_pk_bf16_f32", Pr[2 * kt + 1], tt[2], tt[3]))
        return out

    def sm_tile(Sr, Pr, ps, e0=0, e1=0):
        return sm_half(Sr, Pr, 0, ps, True, e0) + sm_half(Sr, Pr, 1, ps, False, e1)

    def allrows(op, x, t):
        return [valu("v_mov_b32", t, x), swap16(x, t), valu(op, x, x, t),
                valu("v_mov_b32", t, x), swap32(x, t), valu(op, x, x, t)]

    def rowmax8(Sr, m, t):
        o = [valu("v_max3_f32", m, Sr[0], Sr[1], Sr[2]), valu("v_max3_f32", t, Sr[3], Sr[4], Sr[5]),
             valu("v_max3_f32", m, m, Sr[6], Sr[7]), valu("v_max_f32", m, m, t)]
        return o + allrows("v_max_f32", m, t)

    def stamp():
        if not cfg.stamps:
            return []
        return [raw(f"{'s_memrealtime' if cfg.rt else 's_memtime'} {sST}", "smem", [], sST.names()), smov("m0", sSI),
                wait(lgkm=0),
                raw(f"v_writelane_b32 {X1}, {sST[0]}, m0", "valu", sST[0].names() + ["m0"] + X1.names(), X1.names()),
                salu("s_add_u32", sSI, sSI, 1)]

    def kfrag(i, buf):
        kt, ks = i // 6, i % 6
        return dsr128(buf, vK[ks % 2], kt * 6144 + (ks // 2) * 1024)

    def vfrag(db, buf):
        a_ = vV[db % 4]
        return [dsrtr(buf[0:2], a_, (db // 4) * 1024), dsrtr(buf[2:4], a_, 6144 + (db // 4) * 1024)]

    ENTRY_PEND = [set(F[0].names()), set(F[1].names())]

    pro = []
    a = pro.append
    T = [V(32 + i) for i in range(32)]
    vL = T[0]
    a(scmp("s_cmp_ge_u32", S(2), 256))
    a(branch("s_cbranch_scc1", "L_end", ["scc"]))
    a(raw("s_load_dwordx4 s[4:7], s[0:1], 0", "smem", [], ["s4", "s5", "s6", "s7"]))
    a(raw("s_load_dwordx4 s[8:11], s[0:1], 16", "smem", [], ["s8", "s9", "s10", "s11"]))
    if cfg.stamps:
        a(raw(f"s_load_dwordx2 s[28:29], s[0:1], {32 if cfg.dbg else 40}", "smem", [], ["s28", "s29"]))
        a(smov(sSI, 0))
        a(valu("v_mov_b32", X1, 0))
    vmq = []
    if cfg.pref:
        a(raw("s_getpc_b64 s[48:49]", "salu", [], ["s48", "s49"]))
        a(label("L_pc"))
        a(valu("v_lshlrev_b32", T[1], 7, V(0)))
        a(raw(f"v_min_u32 {T[1]}, L_end-L_pc, {T[1]}", "valu", T[1].names(), T[1].names()))
        a(raw(f"global_load_dword {V(254)}, {T[1]}, s[48:49]", "dma", T[1].names() + ["s48", "s49"], []))
        vmq.append("code")
    a(valu("v_lshrrev_b32", T[2], 6, V(0)))
    a(valu("v_and_b32", vL, 63, V(0)))
    a(valu("v_readfirstlane_b32", sW, T[2]))
    a(salu("s_mul_i32", sT0, S(2), 110592, scc=False))
    a(salu("s_mul_i32", sT1, S(2), 196608, scc=False))
    r8, j8, rh, E, r384 = T[3], T[4], T[5], T[6], T[7]
    a(valu("v_lshrrev_b32", r8, 3, vL))
    a(valu("v_and_b32", j8, 7, vL))
    a(valu("v_lshrrev_b32", rh, 4, vL))
    a(valu("v_mul_u32_u24", r384, 384, r8))
    a(valu("v_xor_b32", E, j8, rh))
    a(valu("v_lshl_add_u32", E, E, 4, r384))
    a(salu("s_mul_i32", sW3072, sW, 3072, scc=False))
    a(salu("s_and_b32", sWodd, sW, 1))
    a(salu("s_lshl_b32", sT2, sWodd, 6))
    a(valu("v_xor_b32", voffK, sT2, E))
    a(valu("v_add_u32", voffK, sW3072, voffK))
    Eo = T[8]
    a(valu("v_xor_b32", Eo, 64, E))
    a(valu("v_lshlrev_b32", T[9], 1, rh))
    a(valu("v_xor_b32", T[9], T[9], j8))
    a(valu("v_lshl_add_u32", voffV, T[9], 4, r384))
    a(valu("v_add_u32", voffV, sW3072, voffV))
    a(salu("s_mul_i32", sT3, sW, 24576, scc=False))
    a(salu("s_lshr_b32", sT2, sW, 1))
    a(salu("s_mul_i32", sT2, sT2, 6144, scc=False))
    a(wait(lgkm=0))
    for srd, lo, off, sz in ((srdK, 6, sT1, 196608), (srdQ, 4, sT0, 110592), (srdV, 8, sT1, 196608),
                             (srdO, 10, sT0, 110592)):
        a(salu("s_add_u32", srd[0], S(lo), off))
        a(salu("s_addc_u32", srd[1], S(lo + 1), 0, rd_scc=True))
        a(smov(srd[2], sz))
        a(smov(srd[3], 0x20000))
    if cfg.stamps:
        a(smov(srdW[2], 256 if cfg.dbg else 0x10000000))
        a(smov(srdW[3], 0x20000))
        a(raw(f"s_memrealtime {sST}", "smem", [], sST.names()))
        a(wait(lgkm=0))
        a(raw(f"v_writelane_b32 {X1}, {sST[0]}, 62", "valu", sST[0].names() + X1.names(), X1.names()))
    pro += stamp()

    def issue(pairs, lab, setg):
        for k, (m, d) in enumerate(pairs):
            a(m)
            if k == 0:
                a(setg)
            a(d)
            vmq.append(lab)

    def vmwait(*labs):
        last = max(i for i, l in enumerate(vmq) if l in labs)
        return len(vmq) - 1 - last

    def ldK(u):
        issue(dma3(voffK, srdK, sG, sW3072, (u % 6) * SLOT), f"K{u}", smov(sG, u * SLOT))

    def ldV(u):
        issue(dma3(voffV, srdV, sG, sW3072, VRING + ((u + 1) % 6) * SLOT), f"V{u}", smov(sG, u * SLOT))

    QORD = [X, 0, 1, 2, 3]
    D = cfg.D

    def ldQ(t, i):
        setg = salu("s_add_u32", sG, sT3, (2 * t + i) * 3072)
        issue(dma3(Eo if i else E, srdQ, sG, sW3072, (2 + t + 6 * i) * SLOT), f"Q{t}", setg)

    def ldX():
        issue(dma3(voffK, srdQ, sG, sW3072, 12 * SLOT), f"Q{X}", smov(sG, 256 * 384))

    dq = [(lambda: ldK(0), None), (ldX, None)]
    for t in range(4):
        dq += [(lambda t=t: ldQ(t, 0), None), (lambda t=t: ldQ(t, 1), None)]
    for g in range(D):
        need = g - 1 if 1 <= g <= 4 else None
        dq += [(lambda g=g: ldK(g + 1), need), (lambda g=g: ldV(g), need)]
    consumed = set()

    def pump(k):
        for _ in range(k):
            if dq:
                fn, need = dq[0]
                assert need is None or need in consumed, need
                dq.pop(0)
                fn()

    if cfg.xdelay:
        a(smov(sU, cfg.xdelay))
        a(label("L_spin"))
        a(nop(13))
        a(salu("s_sub_u32", sU, sU, 1))
        a(scmp("s_cmp_lg_u32", sU, 0))
        a(branch("s_cbranch_scc1", "L_spin", ["scc"]))
    if cfg.xload:
        a(raw("s_load_dwordx2 s[28:29], s[0:1], 40", "smem", [], ["s28", "s29"]))
        a(smov(srdW[2], 0x10000000))
        a(smov(srdW[3], 0x20000))
        a(salu("s_mul_i32", sG, S(2), cfg.xload * SLOT, scc=False))
        a(smov(sU, cfg.xload))
        a(wait(lgkm=0))
        a(label("L_xl"))
        for m_, d_ in dma3(voffK, srdW, sG, sW3072, 0):
            a(m_)
            a(d_)
        a(salu("s_add_u32", sG, sG, SLOT))
        a(salu("s_sub_u32", sU, sU, 1))
        a(scmp("s_cmp_lg_u32", sU, 0))
        a(branch("s_cbranch_scc1", "L_xl", ["scc"]))
        a(wait(vm=0))
    pump(4)
    a(smov(sC2[0], f32bits(CSCALE)))
    a(smov(sC2[1], f32bits(CSCALE)))
    a(smov(sTHR, f32bits(cfg.thr)))
    a(smov(sPOS, SLOT))
    a(smov(sD, SLOT))
    a(smov(sU, 0))
    a(salu("s_add_u32", sDMA, sW3072, ((D + 1) % 6) * SLOT))
    r16, cg, t1, t2 = T[10], T[11], T[12], T[13]
    a(valu("v_and_b32", r16, 15, vL))
    a(valu("v_lshrrev_b32", cg, 4, vL))
    a(valu("v_and_b32", t1, 7, r16))
    a(valu("v_lshlrev_b32", t1, 7, t1))
    a(valu("v_lshrrev_b32", t2, 1, r16))
    a(valu("v_xor_b32", t2, t2, cg))
    a(valu("v_lshl_add_u32", t1, t2, 4, t1))
    a(valu("v_lshrrev_b32", t2, 3, r16))
    a(valu("v_mul_u32_u24", vK[0], 3072, t2))
    a(valu("v_add_u32", vK[0], vK[0], t1))
    a(valu("v_xor_b32", vK[1], 64, vK[0]))
    vQs = [T[14], T[15], T[16], T[17]]
    a(valu("v_mul_u32_u24", vQs[0], 6 * SLOT, t2))
    a(valu("v_add_u32", vQs[0], vQs[0], t1))
    a(salu("s_add_u32", sT0, sW3072, 2 * SLOT))
    a(valu("v_add_u32", vQs[0], sT0, vQs[0]))
    a(valu("v_xor_b32", vQs[1], 64, vQs[0]))
    a(salu("s_add_u32", sT0, sT2, 12 * SLOT))
    a(valu("v_add_u32", vQs[2], sT0, vK[0]))
    a(valu("v_add_u32", vQs[3], sT0, vK[1]))
    a(valu("v_bfe_u32", t1, vL, 2, 3))
    a(valu("v_lshlrev_b32", t2, 7, t1))
    a(valu("v_lshrrev_b32", t1, 1, t1))
    a(valu("v_lshl_add_u32", t2, t1, 5, t2))
    a(valu("v_and_b32", t1, 3, vL))
    a(valu("v_lshl_add_u32", t2, t1, 3, t2))
    a(valu("v_lshrrev_b32", t1, 5, vL))
    a(valu("v_mul_u32_u24", t1, 3072, t1))
    a(valu("v_add_u32", t2, t2, t1))
    a(valu("v_add_u32", vV[0], VRING + SLOT, t2))
    for i in range(1, 4):
        a(valu("v_xor_b32", vV[i], i << 5, vV[0]))
    Z = V(TE[0].i, 4)
    for i in range(4):
        a(valu("v_mov_b32", Z[i], 0))
    for t in range(5):
        a(valu("v_mov_b32", L[t], 0))
    for g in [V(64 + 16 * i, 16) for i in range(4)] + [A(120 + 16 * i, 16) for i in range(7)]:
        a(mfma32(g, Z, Z, 0))
    KF = ([S1["a"][2][0:4], S1["a"][2][4:8], S1["a"][3][0:4], S1["a"][3][4:8], P0["b"][0], P0["b"][1], P1[2], P1[3]]
          + F[2:6])
    pump(cfg.lead - 4)
    a(wait(vm=vmwait("K0", f"Q{X}")))
    a(barrier())
    pro += stamp()
    RAW = [V(4 * i, 4) for i in range(6)]
    UT = [V(24 + 2 * i, 2) for i in range(4)]
    Sdst = {0: S0[0], 1: S0[1], X: SX, 2: S1["b"][2], 3: S1["b"][3]}
    for t in QORD:
        if t != X:
            pro.extend(stamp())
            a(wait(vm=vmwait(f"Q{t}")))
            pro.extend(stamp())
        for ks in range(6):
            if t == X:
                a(dsr128(RAW[ks], vQs[2 + ks % 2], (ks // 2) * 1024))
            else:
                a(dsr128(RAW[ks], vQs[ks % 2], t * SLOT + (ks // 2) * 1024))
        if t == X:
            for i in range(12):
                a(kfrag(i, KF[i]))
            for i in range(2):
                a(valu("v_add_u32", vK[i], sPOS, vK[i]))
        pump(1)
        for ks in range(6):
            for r in range(4):
                u2 = UT[r]
                a(valu("v_lshlrev_b32", u2[0], 16, RAW[ks][r]))
                a(valu("v_and_b32", u2[1], 0xFFFF0000, RAW[ks][r]))
            for r in range(4):
                a(valu("v_pk_mul_f32", UT[r], UT[r], sC2))
            for r in range(4):
                a(valu("v_cvt_pk_bf16_f32", UT[r][0], UT[r][0], UT[r][1]))
            for r in range(4):
                a(valu("v_accvgpr_write_b32", Q[t][ks][r], UT[r][0]))
            if ks >= 1:
                for kt in range(2):
                    Dd = Sdst[t][4 * kt:4 * kt + 4]
                    a(mfma16(Dd, KF[6 * kt + ks - 1], Q[t][ks - 1], 0 if ks == 1 else Dd))
        consumed.add(t)
        for kt in range(2):
            Dd = Sdst[t][4 * kt:4 * kt + 4]
            a(mfma16(Dd, KF[6 * kt + 5], Q[t][5], Dd))
        pump(1)
        if t == QORD[-1]:
            for i in range(4):
                a(valu("v_mov_b32", Z[i], 0))
            for g in [V(16 * i, 16) for i in range(2)]:
                a(mfma32(g, Z, Z, 0))
        m_, tt_ = TE[4], TE[5]
        pro += rowmax8(Sdst[t], m_, tt_)
        for i in range(8):
            a(valu("v_sub_f32", Sdst[t][i], Sdst[t][i], m_))
        for i in range(4):
            a(valu("v_sub_f32", NM[t][i], 0, m_))
        if t in (0, 1):
            pro += sm_tile(S0[t], P0["a"][t], L[t])
        if t == X:
            pro += sm_half(SX, PX, 0, PSX, True)
    pro += stamp()
    a(wait(vm=vmwait("K1", "V0")))
    a(barrier())
    pro += stamp()
    a(kfrag(0, F[0]))
    a(kfrag(1, F[1]))
    pump(100)
    assert vmwait("K1", "V0") == 6 * (D - 1)
    for g in [V(32 + 16 * i, 16) for i in range(2)]:
        a(mfma32(g, Z, Z, 0))
    a(valu("v_add_u32", voffK, SLOT, voffK))
    a(smov(sG, D * SLOT))
    a(scmp("s_cmp_lg_u32", sWodd, 0))
    a(branch("s_cbranch_scc1", "L_enterB", ["scc"]))
    pro, pend = finalize2(pro, log=logs)
    assert pend[-2:] == ENTRY_PEND, pend
    proB = [label("L_enterB")]
    for t in (2, 3):
        for i in range(8):
            proB.append(valu("v_mov_b32", S1["a"][t][i], S1["b"][t][i]))
    for t in (0, 1):
        for i in range(4):
            proB.append(valu("v_mov_b32", P0["b"][t][i], P0["a"][t][i]))
    proB.append(branch("s_branch", "L_B"))
    proB, _ = finalize2(proB, hist=pro[-30:], log=logs)

    slow_blocks = []

    def slow(name, ret, items):
        o = [label(name), nop(16)]
        for t, Sr, Pr, ps, Sn in items:
            d, f, tmp = TE[0], TE[1], TE[2]
            o += rowmax8(Sr, d, tmp)
            o.append(valu("v_max_f32", d, 0, d))
            o.append(valu("v_sub_f32", f, 0, d))
            o.append(trans("v_exp_f32", f, f))
            for i in range(4):
                o.append(valu("v_sub_f32", NM[t][i], NM[t][i], d))
            for i in range(8):
                o.append(valu("v_sub_f32", Sr[i], Sr[i], d))
            if Sn is not None:
                for i in range(8):
                    o.append(valu("v_sub_f32", Sn[i], Sn[i], d))
            o.append(valu("v_mul_f32", L[t], f, L[t]))
            for g in O[t]:
                for i in range(4):
                    r = g[i]
                    if r.f == "v":
                        o.append(valu("v_mul_f32", r, f, r))
                    else:
                        tq = TE[2 + i % 2]
                        o.append(valu("v_accvgpr_read_b32", tq, r))
                        o.append(valu("v_mul_f32", tq, f, tq))
                        o.append(valu("v_accvgpr_write_b32", r, tq))
            o += sm_tile(Sr, Pr, ps)
        o.append(nop(4))
        o.append(branch("s_branch", ret))
        o, _ = finalize2(o)
        slow_blocks.append(o)

    def chk(pss):
        t = TE[tctr[0] % len(TE)]
        tctr[0] += 1
        o = [valu("v_max3_f32", t, *pss) if len(pss) == 3 else valu("v_max_f32", t, *pss)]
        o.append(valu("v_cmp_lt_f32", "vcc", sTHR, t))
        return o

    def block(B):
        isA = B == "A"
        sw, sr = ("a", "b") if isA else ("b", "a")
        pr, pw = ("a", "b") if isA else ("b", "a")
        Sw = {0: S0[0], 1: S0[1], 2: S1[sw][2], 3: S1[sw][3], X: SX}
        Pr = {0: P0[pr][0], 1: P0[pr][1], 2: P1[2], 3: P1[3], X: PX}
        qt = [0, 1, 2, 3] + ([] if isA else [X])
        pt = [0, 1, 2, 3] + ([X] if isA else [])
        mf, kpos, kend, last = [], {}, {}, {}
        for i in range(12):
            kt, ks = i // 6, i % 6
            kpos[i] = len(mf)
            for t in qt:
                Dd = Sw[t][4 * kt:4 * kt + 4]
                last[(t, kt)] = len(mf)
                mf.append(mfma16(Dd, F[i % 3], Q[t][ks], NM[t] if ks == 0 else Dd))
            kend[i] = len(mf)
        nq = len(mf)
        vb = lambda db: [F[3], F[4], F[5], F[2]][db % 4]
        vpos, vend = {}, {}
        for db in range(12):
            vpos[db] = len(mf)
            for t in pt:
                mf.append(mfma16(O[t][db], vb(db), Pr[t], O[t][db]))
            vend[db] = len(mf)
        n = len(mf)
        sc = Sched(mf)
        gb = n - cfg.barback
        for i in range(1, 12):
            sc.wres[kpos[i]] = True
        for db in range(12):
            if vpos[db] < gb:
                sc.wres[vpos[db]] = True
        assert not sc.wres[gb]
        sc.wres[n] = True
        sc.put_vec_from(1, [kfrag(2, F[2])])
        for i in range(3, 12):
            sc.put_vec_from(kend[i - 3], [kfrag(i, F[i % 3])])
        for db in range(3):
            sc.put_vec_from(kpos[9 + db] + 1, vfrag(db, vb(db)))
        sc.put_vec_from(nq, vfrag(3, vb(3)))
        gl = 0
        for db in range(4, 12):
            gl = sc.put_vec_from(vend[db - 4], vfrag(db, vb(db)))
        assert gl < gb
        if cfg.inner == 1:
            sc.put_sc(gb, *stamp())
        sc.put_sc(gb, wait(vm=6 * (D - 1), lgkm=0), barrier())
        if cfg.inner == 1:
            sc.put_sc(gb, *stamp())
        if cfg.inner == 2 and cfg.stamps:
            st_ = stamp()
            sc.put_sc(gb, st_[1], st_[4], st_[3], st_[0])
        sc.put_vec_from(gb, [kfrag(0, F[0]), kfrag(1, F[1])])
        dmask = sum(1 << u for u in range(32) if (u + D + 1) % 6 == 5)
        g = sc.put_sc_from(1, [scmp("s_bitcmp1_b32", 0x10410, sU),
                               salu("s_cselect_b32", sD, (-5 * SLOT) & 0xFFFFFFFF, sPOS, scc=False, rd_scc=True),
                               scmp("s_bitcmp1_b32", dmask, sU),
                               salu("s_cselect_b32", sDo, (-5 * SLOT) & 0xFFFFFFFF, sPOS, scc=False, rd_scc=True)])
        dm = dma3(voffK, srdK, sG, sDMA, 0) + dma3(voffV, srdV, sG, sDMA, VRING)
        d0, d1 = (nq + 4, gb - 6) if isA else (g + 2, nq - 16)
        if cfg.dlate == 1:
            d0, d1 = (g + 2, nq - 10)
        if cfg.dlate == 2:
            d0, d1 = (nq - 6, nq + 24) if isA else (nq - 30, nq - 2)
        if cfg.dlate == 3:
            d0, d1 = (30, gb - 8) if isA else (g + 2, nq + 10)
        for k, (m_, d_) in enumerate(dm):
            g = d0 + (d1 - d0) * k // 5
            while not (sc.sc_free(g) and sc.free(g + 1) >= 2 and g != nq + 2):
                g += 1
            sc.put_sc(g, m_)
            sc.put_vec(g + 1, d_)
        assert g + 1 < gb
        sc.wres[nq + 2] = True
        g = sc.put_sc_from(g + 2, [salu("s_add_u32", sDMA, sDMA, sDo), salu("s_add_u32", sG, sG, SLOT),
                                   scmp("s_cmp_ge_u32", sU, 15 - D),
                                   salu("s_cselect_b32", sDMA, LDS_BYTES, sDMA, scc=False, rd_scc=True),
                                   salu("s_add_u32", sU, sU, 1)], gmax=n - 4)
        gc1 = nq + 2
        sc.wres[gc1] = False
        assert sc.sc_free(gc1)
        sc.put_sc(gc1, branch("s_cbranch_vccnz", f"L_slow1{B}", ["vcc"]), label(f"L_ret1{B}"))
        gc0 = n - 2
        assert sc.sc_free(gc0) and gc0 >= vpos[11] + 2
        sc.put_sc(gc0, branch("s_cbranch_vccnz", f"L_slow0{B}", ["vcc"]), label(f"L_ret0{B}"))
        sc.put_vec(gc0, valu("v_add_f32", L[0], L[0], PS[0]), valu("v_add_f32", L[1], L[1], PS[1]))
        assert sc.sc_free(n - 1)
        sc.put_sc(n - 1, scmp("s_cmp_eq_u32", sU, 15))
        sc.tail[n].append(branch("s_cbranch_scc1", "L_tailB" if isA else "L_tailA", ["scc"]))
        if not isA:
            sc.tail[n].append(branch("s_branch", "L_A"))
        st1 = sm_tile(S1[sr][2], P1[2], PS[0]) + sm_tile(S1[sr][3], P1[3], PS[1])
        if isA:
            st1 += sm_half(SX, PX, 1, PSX, False) + chk([PS[0], PS[1], PSX])
        else:
            st1 += chk([PS[0], PS[1]]) + sm_half(SX, PX, 0, PSX, True, last[(X, 0)] + 5)
        e1, x1 = sc.fill(st1, 1, gc1 - 1, name=f"{B}.st1")
        items = [(t, S1[sr][t], P1[t], PS[t - 2], S1[sw][t]) for t in (2, 3)]
        if isA:
            items.append((X, SX, PX, PSX, None))
        slow(f"L_slow1{B}", f"L_ret1{B}", items)
        st0 = [valu("v_add_f32", L[2], L[2], PS[0]), valu("v_add_f32", L[3], L[3], PS[1])]
        if isA:
            st0.append(valu("v_add_f32", L[X], L[X], PSX))
        st0 += [valu("v_add_u32", x, sD, x) for x in vK]
        st0 += sm_tile(S0[0], P0[pw][0], PS[0]) + sm_tile(S0[1], P0[pw][1], PS[1]) + chk([PS[0], PS[1]])
        adv = [valu("v_add_u32", x, sD, x) for x in vV]
        sc.put_vec_from(n - 1, adv[0:2])
        for i in adv[2:4]:
            i.earliest = gl + 1
        e0, x0 = sc.fill(st0 + adv[2:4], gc1, gc0 - 1, name=f"{B}.st0")
        slow(f"L_slow0{B}", f"L_ret0{B}", [(t, S0[t], P0[pw][t], PS[t], None) for t in (0, 1)])
        logs.append(f"block {B}: st1 ends gap {e1}/{gc1 - 1} (+{x1} overfull), st0 ends {e0}/{gc0 - 1} (+{x0})")
        if cfg.xnop:
            for g_ in range(cfg.xnop // 2, n - 1, cfg.xnop):
                sc.tail[g_].append(nop(4))
        seq = [label(f"L_{B}")] + sc.emit()
        k = max(i for i, x in enumerate(seq) if x.kind in MFMA_KINDS)
        seq.insert(k + 1, wait(lgkm=1))
        out, pend = finalize2(seq, pend=ENTRY_PEND[1:], log=logs)
        assert pend[-1:] == ENTRY_PEND[1:], pend
        return out

    blkA = block("A")
    blkB = block("B")
    pro[-2:-2] = [wait(lgkm=1)]

    VF = [A(4 * db, 4) for db in range(12)]

    def tail(B):
        isA = B == "A"
        sr, sd = ("b", "a") if isA else ("a", "b")
        pr, pd = ("a", "b") if isA else ("b", "a")
        free = [S0[0][i] for i in range(8)] + [S0[1][i] for i in range(8)]
        lane, q16, gq, t1, t2, t3 = free[0:6]
        INV = {0: V(free[6].i, 2), 1: V(free[8].i, 2), 2: V(free[6].i, 2), 3: V(free[8].i, 2)}
        wa = free[10:14]
        ra, so = free[14], free[15]
        f2 = [S1[sd][2][i] for i in range(8)] + [S1[sd][3][i] for i in range(8)]
        TMP = [V(f2[4 * i].i, 4) for i in range(2)]
        xw, xr, ma = f2[8], f2[9], f2[10]
        ml = V(f2[12].i, 2)
        MLo = [V(P0[pd][0].i, 2), V(P0[pd][0].i + 2, 2)]
        W = []
        a = W.append
        ready = []

        def inv_of(t):
            return allrows("v_add_f32", L[t], t1) + [trans("v_rcp_f32", INV[t][0], L[t])]

        def epi(t, db):
            o = []
            g = O[t][db]
            src = g
            if g.f == "a":
                src = TMP[db % 2]
                for i in range(4):
                    o.append(valu("v_accvgpr_read_b32", src[i], g[i]))
            o.append(valu("v_pk_mul_f32", src[0:2], src[0:2], INV[t], extra="op_sel_hi:[1,0]"))
            o.append(valu("v_pk_mul_f32", src[2:4], src[2:4], INV[t], extra="op_sel_hi:[1,0]"))
            o.append(valu("v_cvt_pk_bf16_f32", src[0], src[0], src[1]))
            o.append(valu("v_cvt_pk_bf16_f32", src[1], src[2], src[3]))
            o.append(dsw64(wa[db % 4], src[0:2], t * 6144 + (db // 4) * 128))
            return o

        DREG = {0: lambda ln, hf: V(16 * ln + 4 * hf, 4), 1: lambda ln, hf: V(48 + 16 * ln + 4 * hf, 4),
                2: lambda ln, hf: V(16 * ln + 8 + 4 * hf, 4), 3: lambda ln, hf: V(48 + 16 * ln + 8 + 4 * hf, 4)}

        def line_out(t, ln):
            o = []
            for hf in range(2):
                off = t * 6144 + hf * 3072 + ln * 128
                d = DREG[t](ln, hf)
                o.append(dsr128(d, ra, off))
                st_ = vstore(d, so, srdO, sT3, off & 4095, cfg.st)
                o.append(("store", [smov(sT3, off & ~4095)] + ([] if cfg.nostore else [st_])))
            return o

        def tile_out(t, mf=()):
            mf = list(mf)
            o = []
            for db in range(12):
                e = epi(t, db)
                if mf:
                    o.append(mf.pop(0))
                o += e[:3]
                if mf and len(mf) > 12 - db:
                    o.append(mf.pop(0))
                o += e[3:]
                if db % 4 == 3:
                    o += line_out(t, db // 4)
            return o + mf

        def pv(t, P):
            return [mfma16(O[t][db], VF[db], P, O[t][db]) for db in range(12)]

        W += stamp()
        for db in range(6):
            W += vfrag(db, VF[db])
        a(valu("v_mbcnt_lo_u32_b32", lane, -1, 0))
        a(valu("v_mbcnt_hi_u32_b32", lane, -1, lane))
        a(valu("v_mov_b32", t1, L[0]))
        a(valu("v_and_b32", q16, 15, lane))
        a(valu("v_lshrrev_b32", gq, 4, lane))
        a(swap16(L[0], t1))
        a(valu("v_add_f32", L[0], L[0], t1))
        a(salu("s_mul_i32", sT0, sW, 24576, scc=False))
        a(valu("v_mov_b32", t1, L[0]))
        a(valu("v_mul_u32_u24", t2, 384, q16))
        a(valu("v_and_b32", t3, 7, q16))
        a(swap32(L[0], t1))
        a(valu("v_add_f32", L[0], L[0], t1))
        a(valu("v_lshrrev_b32", t1, 1, gq))
        a(trans("v_rcp_f32", INV[0][0], L[0]))
        m0 = pv(0, P0[pr][0])
        rest = [valu("v_xor_b32", t3, t3, t1), valu("v_lshl_add_u32", t2, t3, 4, t2), valu("v_and_b32", t3, 1, gq),
                valu("v_lshl_add_u32", t2, t3, 3, t2), valu("v_add_u32", wa[0], sT0, t2)]
        rest += [valu("v_xor_b32", wa[i], i << 5, wa[0]) for i in range(1, 4)]
        rest += [valu("v_lshrrev_b32", t1, 3, lane), valu("v_and_b32", t2, 7, lane),
                 valu("v_mul_u32_u24", t3, 384, t1), valu("v_add_u32", t3, sT0, t3),
                 valu("v_lshl_add_u32", so, t2, 4, t3), valu("v_xor_b32", t2, t2, t1),
                 valu("v_lshl_add_u32", ra, t2, 4, t3)]
        vr = []
        for db in range(6, 12):
            vr += vfrag(db, VF[db])
        for k in range(6):
            a(m0[k])
            W += vr[2 * k:2 * k + 2]
            W += rest[3 * k:3 * k + 3]
        W += tile_out(0, m0[6:] + pv(1, P0[pr][1]))
        W += stamp() if cfg.tstamps else []
        W += inv_of(1)
        W += tile_out(1)
        W += stamp() if cfg.tstamps else []
        sm = []
        if isA:
            sm += sm_half(SX, PX, 1, PSX, False)
        sm += sm_tile(S1[sr][2], P1[2], PS[0]) + sm_tile(S1[sr][3], P1[3], PS[1])
        sm += chk([PS[0], PS[1], PSX] if isA else [PS[0], PS[1]])
        W += sm
        W += [branch("s_cbranch_vccnz", f"L_slowT{B}", ["vcc"]), label(f"L_retT{B}"),
              valu("v_add_f32", L[2], L[2], PS[0]), valu("v_add_f32", L[3], L[3], PS[1])]
        items = [(t, S1[sr][t], P1[t], PS[t - 2], None) for t in (2, 3)]
        if isA:
            a(valu("v_add_f32", L[X], L[X], PSX))
            items.append((X, SX, PX, PSX, None))
        slow(f"L_slowT{B}", f"L_retT{B}", items)
        W += stamp() if cfg.tstamps else []
        m2 = pv(2, P1[2])
        i2 = inv_of(2)
        xs = [salu("s_lshr_b32", sT1, sW, 1), salu("s_mul_i32", sT2, sT1, 3 * SLOT, scc=False),
              salu("s_add_u32", sT2, sT2, 8 * SLOT + (SLOT if isA else 0)), valu("v_lshl_add_u32", xw, lane, 4, sT2),
              valu("v_add_u32", xr, (6144 - SLOT) if isA else 0, xw),
              salu("s_lshl_b32", sT2, sT1, 8), salu("s_add_u32", sT2, sT2, MLBASE),
              valu("v_lshl_add_u32", ma, q16, 3, sT2)]
        fl = i2 + xs
        for k in range(6):
            a(m2[k])
            W += fl[3 * k:3 * k + 3]
        W += tile_out(2, m2[6:] + (pv(X, PX) if isA else []) + pv(3, P1[3]))
        W += stamp() if cfg.tstamps else []
        for db in range(12):
            a(dsw128(xw, O[X][db], db * 1024))
        W += allrows("v_add_f32", L[X], t1)
        a(valu("v_mov_b32", ml[0], NM[X][0]))
        a(valu("v_mov_b32", ml[1], L[X]))
        a(dsw64(ma, ml, 128 if isA else 0))
        W += stamp() if cfg.tstamps else []
        W += inv_of(3)
        W += tile_out(3)
        W += stamp() if cfg.tstamps else []
        a(wait(lgkm=0))
        a(barrier())
        W += stamp() if cfg.tstamps else []
        XS = [[V(96 + 4 * k, 4) for k in range(6)], [V(S1[sr][2].i + 4 * k, 4) for k in range(4)] + [P1[2], P1[3]]]
        for s_ in range(2):
            a(dsr64(MLo[s_], ma, s_ * 128))
        for s_ in range(2):
            for k in range(6):
                a(dsr128(XS[s_][k], xr, s_ * SLOT + k * 1024))
        a(valu("v_min_f32", t1, MLo[0][0], MLo[1][0]))
        for s_ in range(2):
            a(valu("v_sub_f32", MLo[s_][0], t1, MLo[s_][0]))
        for s_ in range(2):
            a(trans("v_exp_f32", MLo[s_][0], MLo[s_][0]))
        a(valu("v_mul_u32_u24", t3, 384, q16))
        a(valu("v_mul_f32", t2, MLo[0][0], MLo[0][1]))
        a(valu("v_fma_f32", t2, MLo[1][0], MLo[1][1], t2))
        a(trans("v_rcp_f32", t2, t2))
        a(valu("v_and_b32", t1, 1, gq))
        a(valu("v_lshl_add_u32", t3, t1, 5, t3))
        a(valu("v_lshrrev_b32", t1, 1, gq))
        a(valu("v_lshl_add_u32", t3, t1, 4, t3))
        for s_ in range(2):
            a(valu("v_mul_f32", MLo[s_][0], MLo[s_][0], t2))
        a(salu("s_mul_i32", sT1, sT1, 6144, scc=False))
        a(salu("s_add_u32", sT1, sT1, 256 * 384 + (192 if isA else 0)))
        for kp in range(3):
            for k in (2 * kp, 2 * kp + 1):
                for h in range(2):
                    x0, x1 = XS[0][k][2 * h:2 * h + 2], XS[1][k][2 * h:2 * h + 2]
                    a(valu("v_pk_mul_f32", x0, x0, MLo[0], extra="op_sel_hi:[1,0]"))
                    a(valu("v_pk_fma_f32", x0, x1, MLo[1], x0, extra="op_sel_hi:[1,0,1]"))
            dq = XS[1][2 * kp]
            g0, g1 = XS[0][2 * kp], XS[0][2 * kp + 1]
            a(valu("v_cvt_pk_bf16_f32", dq[0], g0[0], g0[1]))
            a(valu("v_cvt_pk_bf16_f32", dq[2], g1[0], g1[1]))
            a(valu("v_cvt_pk_bf16_f32", dq[1], g0[2], g0[3]))
            a(valu("v_cvt_pk_bf16_f32", dq[3], g1[2], g1[3]))
            a(swap16(dq[0], dq[2]))
            a(swap16(dq[1], dq[3]))
            a(vstore(dq, t3, srdO, sT1, kp * 64, cfg.stx))
        seq = [label(f"L_tail{B}")]
        pendst = []
        for it in W:
            if isinstance(it, tuple):
                pendst.append([cfg.sdist, it[1]])
                continue
            if it.kind in ("bar", "br") or (it.kind == "salu" and sT3.names()[0] in it.wr):
                pass
            seq.append(it)
            for p in pendst:
                p[0] -= 1
            if pendst and pendst[0][0] <= 0 and it.kind != "br":
                seq += pendst.pop(0)[1]
                for p in pendst:
                    p[0] = max(p[0], cfg.sgap)
        for p in pendst:
            seq += p[1]
        a = seq.append
        if cfg.stamps:
            seq += stamp()
            a(wait(vm=0))
            seq += stamp()
            a(raw(f"s_memrealtime {sST}", "smem", [], sST.names()))
            a(wait(lgkm=0))
            a(raw(f"v_writelane_b32 {X1}, {sST[0]}, 63", "valu", sST[0].names() + X1.names(), X1.names()))
            a(salu("s_lshl_b32", sT2, S(2), 2))
            a(salu("s_add_u32", sT2, sT2, sW))
            a(salu("s_lshl_b32", sT2, sT2, 8))
            a(valu("v_lshlrev_b32", t1, 2, lane))
            a(vstore(X1, t1, srdW, sT2, 0, "", op="buffer_store_dword"))
        if isA:
            a(label("L_end"))
        a(raw("s_endpgm", "br"))
        out, pend = finalize2(seq, pend=ENTRY_PEND[1:], hist=(blkB if isA else blkA)[-30:], log=logs)
        return out

    tailB = tail("B")
    tailA = tail("A")
    fin = []

    for blk in (pro, blkA, blkB, tailA, tailB, fin):
        lastw = None
        for i in blk:
            if "scc" in i.rd:
                ok = lastw is not None and (lastw.txt.startswith("s_cmp") or lastw.txt.startswith("s_bitcmp")
                                            or i.txt.startswith("s_addc"))
                assert ok, (lastw, i)
            if "scc" in i.wr:
                lastw = i
    bad = 0
    bad += check_path("pro-A-B", pro, blkA, blkB, blkA)
    bad += check_path("pro-B-A", pro, proB, blkB, blkA, blkB)
    bad += check_path("A-tailB-fin", blkA, tailB, fin)
    bad += check_path("B-tailA-fin", blkB, tailA, fin)
    assert bad == 0
    info = dict(A=est16(blkA), B=est16(blkB), nA=len(blkA), nB=len(blkB), pro=est16(pro),
                tailA=est16(tailA), tailB=est16(tailB), fin=est16(fin))

    body = pro + blkA + blkB + proB + tailB + tailA + fin
    for o in slow_blocks:
        body += o
    hdr = f"""; Flash-style attention forward, one workgroup (4 waves, one per SIMD, 512 registers) per (batch, head).
; Softmax: running reference max per row (true max of the keys seen when it was last set); every 32-key unit is
; checked and falls back to a rescale with the true running max when the partial sum leaves the safe range.
; @launch grid=(256,1,1) block=(256,1,1) lds={LDS_BYTES}
.amdgcn_target "amdgcn-amd-amdhsa--gfx950"
.text
.globl {KN}
.p2align 8
.type {KN},@function
{KN}:
"""
    ftr = f"""
.section .rodata,"a"
.p2align 6
.amdhsa_kernel {KN}
  .amdhsa_next_free_vgpr 512
  .amdhsa_next_free_sgpr 64
  .amdhsa_accum_offset 256
  .amdhsa_group_segment_fixed_size 0
  .amdhsa_kernarg_size 48
  .amdhsa_user_sgpr_count 2
  .amdhsa_user_sgpr_kernarg_segment_ptr 1
  .amdhsa_system_sgpr_workgroup_id_x 1
  .amdhsa_float_denorm_mode_32 3
.end_amdhsa_kernel
"""
    txt = hdr + "\n".join(("" if i.kind == "label" else "    ") + i.txt for i in body) + ftr
    return txt, info, logs


if __name__ == "__main__":
    out = sys.argv[1]
    cfg = Cfg()
    for kv in sys.argv[2:]:
        k, v = kv.split("=")
        cur = getattr(cfg, k)
        if isinstance(cur, bool):
            v = v in ("1", "true", "True")
        elif isinstance(cur, (int, float)):
            v = type(cur)(float(v))
        setattr(cfg, k, v)
    txt, info, logs = gen(cfg)
    open(out, "w").write(txt)
    print(info)
    for l in logs:
        if cfg.verbose or not l.startswith("pad"):
            print("  ", l)
```

```python
import sys, struct, math
from asmlib import *

KN = "standalone__gqa_softmax__near_ridge_kernel"
SLOT = 12288
VRING = 6 * SLOT
MLBASE = 13 * SLOT
LDS_BYTES = 163840
CSCALE = 192 ** -0.5 * math.log2(math.e)


def f32bits(x):
    return struct.unpack("<I", struct.pack("<f", x))[0]


X = 4
O = {0: [V(4 * d, 4) for d in range(12)],
     1: [V(48 + 4 * d, 4) for d in range(12)],
     2: [V(96 + 4 * d, 4) for d in range(8)] + [A(216 + 4 * d, 4) for d in range(4)],
     3: [A(168 + 4 * d, 4) for d in range(12)],
     X: [A(120 + 4 * d, 4) for d in range(12)]}
S0 = {0: V(128, 8), 1: V(136, 8)}
SX = V(144, 8)
S1 = {"a": {2: V(152, 8), 3: V(160, 8)}, "b": {2: V(168, 8), 3: V(176, 8)}}
P0 = {"a": {0: V(184, 4), 1: V(188, 4)}, "b": {0: V(192, 4), 1: V(196, 4)}}
P1 = {2: V(200, 4), 3: V(204, 4)}
PX = V(208, 4)
NM = {t: V(212 + 4 * t, 4) for t in range(5)}
L = {t: V(232 + t) for t in range(5)}
vK = [V(237), V(238)]
vV = [V(239 + i) for i in range(4)]
voffK, voffV = V(243), V(244)
PS = [V(245), V(246)]
PSX = V(247)
PSZ = V(254)
TE = [V(248 + i) for i in range(6)]
X1 = V(255)
Q = {t: [A(24 * t + 4 * ks, 4) for ks in range(6)] for t in range(5)}
F = [A(232 + 4 * i, 4) for i in range(6)]

srdQ, srdK, srdV, srdO, srdW = S(12, 4), S(16, 4), S(20, 4), S(24, 4), S(28, 4)
sW, sTHR, sU, sG, sDMA, sD, sDo, sPOS = S(32), S(33), S(34), S(35), S(36), S(37), S(38), S(39)
sT0, sT1, sT2, sT3 = S(40), S(41), S(42), S(43)
sW3072, sWodd = S(44), S(45)
sC2 = S(46, 2)
sST = S(50, 2)
sSI = S(52)


class Cfg:
    ld = "nt"
    st = ""
    stamps = False
    rt = False
    thr = 2.0 ** 24
    barback = 9
    verbose = False
    dwin = 30
    xnop = 0
    tstamps = False
    nostore = False
    stx = ""
    sdist = 12
    sgap = 6
    xdelay = 0
    xload = 0
    dbg = False
    inner = 1
    dlate = 0
    pref = True
    align8 = False
    apad = 0
    D = 3
    lead = 5


def gen(cfg):
    logs = []

    def dma3(voff, srd, soff, base_sreg, const):
        return [[salu("s_add_u32", "m0", base_sreg, const + t * 896), dma(voff, srd, soff, t * 128, cfg.ld)]
                for t in range(3)]

    tctr = [0]

    def sm_half(Sr, Pr, kt, ps, first, earliest=0):
        out = []
        tt = []
        for e in range(4):
            t = TE[tctr[0] % len(TE)]
            tctr[0] += 1
            tt.append(t)
            i = trans("v_exp_f32", t, Sr[4 * kt + e])
            i.earliest = earliest
            out.append(i)
            if e == 1:
                out.append(valu("v_add_f32", ps, tt[0], tt[1]) if first else valu("v_add_f32", ps, ps, tt[0]))
                if not first:
                    out.append(valu("v_add_f32", ps, ps, tt[1]))
                out.append(valu("v_cvt_pk_bf16_f32", Pr[2 * kt], tt[0], tt[1]))
            if e == 3:
                out.append(valu("v_add_f32", ps, ps, tt[2]))
                out.append(valu("v_add_f32", ps, ps, tt[3]))
                out.append(valu("v_cvt_pk_bf16_f32", Pr[2 * kt + 1], tt[2], tt[3]))
        return out

    def sm_tile(Sr, Pr, ps, e0=0, e1=0):
        return sm_half(Sr, Pr, 0, ps, True, e0) + sm_half(Sr, Pr, 1, ps, False, e1)

    def allrows(op, x, t):
        return [valu("v_mov_b32", t, x), swap16(x, t), valu(op, x, x, t),
                valu("v_mov_b32", t, x), swap32(x, t), valu(op, x, x, t)]

    def rowmax8(Sr, m, t):
        o = [valu("v_max3_f32", m, Sr[0], Sr[1], Sr[2]), valu("v_max3_f32", t, Sr[3], Sr[4], Sr[5]),
             valu("v_max3_f32", m, m, Sr[6], Sr[7]), valu("v_max_f32", m, m, t)]
        return o + allrows("v_max_f32", m, t)

    def stamp():
        if not cfg.stamps:
            return []
        return [raw(f"{'s_memrealtime' if cfg.rt else 's_memtime'} {sST}", "smem", [], sST.names()), smov("m0", sSI),
                wait(lgkm=0),
                raw(f"v_writelane_b32 {X1}, {sST[0]}, m0", "valu", sST[0].names() + ["m0"] + X1.names(), X1.names()),
                salu("s_add_u32", sSI, sSI, 1)]

    def kfrag(i, buf):
        kt, ks = i // 6, i % 6
        return dsr128(buf, vK[ks % 2], kt * 6144 + (ks // 2) * 1024)

    def vfrag(db, buf):
        a_ = vV[db % 4]
        return [dsrtr(buf[0:2], a_, (db // 4) * 1024), dsrtr(buf[2:4], a_, 6144 + (db // 4) * 1024)]

    ENTRY_PEND = [set(F[0].names()), set(F[1].names())]

    pro = []
    a = pro.append
    T = [V(32 + i) for i in range(32)]
    vL = T[0]
    a(scmp("s_cmp_ge_u32", S(2), 256))
    a(branch("s_cbranch_scc1", "L_end", ["scc"]))
    a(raw("s_load_dwordx4 s[4:7], s[0:1], 0", "smem", [], ["s4", "s5", "s6", "s7"]))
    a(raw("s_load_dwordx4 s[8:11], s[0:1], 16", "smem", [], ["s8", "s9", "s10", "s11"]))
    if cfg.stamps:
        a(raw(f"s_load_dwordx2 s[28:29], s[0:1], {32 if cfg.dbg else 40}", "smem", [], ["s28", "s29"]))
        a(smov(sSI, 0))
        a(valu("v_mov_b32", X1, 0))
    vmq = []
    if cfg.pref:
        a(raw("s_getpc_b64 s[48:49]", "salu", [], ["s48", "s49"]))
        a(label("L_pc"))
        a(valu("v_lshlrev_b32", T[1], 7, V(0)))
        a(raw(f"v_min_u32 {T[1]}, L_end-L_pc, {T[1]}", "valu", T[1].names(), T[1].names()))
        a(raw(f"global_load_dword {V(254)}, {T[1]}, s[48:49]", "dma", T[1].names() + ["s48", "s49"], []))
        vmq.append("code")
    a(valu("v_lshrrev_b32", T[2], 6, V(0)))
    a(valu("v_and_b32", vL, 63, V(0)))
    a(valu("v_readfirstlane_b32", sW, T[2]))
    a(salu("s_mul_i32", sT0, S(2), 110592, scc=False))
    a(salu("s_mul_i32", sT1, S(2), 196608, scc=False))
    r8, j8, rh, E, r384 = T[3], T[4], T[5], T[6], T[7]
    a(valu("v_lshrrev_b32", r8, 3, vL))
    a(valu("v_and_b32", j8, 7, vL))
    a(valu("v_lshrrev_b32", rh, 4, vL))
    a(valu("v_mul_u32_u24", r384, 384, r8))
    a(valu("v_xor_b32", E, j8, rh))
    a(valu("v_lshl_add_u32", E, E, 4, r384))
    a(salu("s_mul_i32", sW3072, sW, 3072, scc=False))
    a(salu("s_and_b32", sWodd, sW, 1))
    a(salu("s_lshl_b32", sT2, sWodd, 6))
    a(valu("v_xor_b32", voffK, sT2, E))
    a(valu("v_add_u32", voffK, sW3072, voffK))
    Eo = T[8]
    a(valu("v_xor_b32", Eo, 64, E))
    a(valu("v_lshlrev_b32", T[9], 1, rh))
    a(valu("v_xor_b32", T[9], T[9], j8))
    a(valu("v_lshl_add_u32", voffV, T[9], 4, r384))
    a(valu("v_add_u32", voffV, sW3072, voffV))
    a(salu("s_mul_i32", sT3, sW, 24576, scc=False))
    a(salu("s_lshr_b32", sT2, sW, 1))
    a(salu("s_mul_i32", sT2, sT2, 6144, scc=False))
    a(wait(lgkm=0))
    for srd, lo, off, sz in ((srdK, 6, sT1, 196608), (srdQ, 4, sT0, 110592), (srdV, 8, sT1, 196608),
                             (srdO, 10, sT0, 110592)):
        a(salu("s_add_u32", srd[0], S(lo), off))
        a(salu("s_addc_u32", srd[1], S(lo + 1), 0, rd_scc=True))
        a(smov(srd[2], sz))
        a(smov(srd[3], 0x20000))
    if cfg.stamps:
        a(smov(srdW[2], 256 if cfg.dbg else 0x10000000))
        a(smov(srdW[3], 0x20000))
        a(raw(f"s_memrealtime {sST}", "smem", [], sST.names()))
        a(wait(lgkm=0))
        a(raw(f"v_writelane_b32 {X1}, {sST[0]}, 62", "valu", sST[0].names() + X1.names(), X1.names()))
    pro += stamp()

    def issue(pairs, lab, setg):
        for k, (m, d) in enumerate(pairs):
            a(m)
            if k == 0:
                a(setg)
            a(d)
            vmq.append(lab)

    def vmwait(*labs):
        last = max(i for i, l in enumerate(vmq) if l in labs)
        return len(vmq) - 1 - last

    def ldK(u):
        issue(dma3(voffK, srdK, sG, sW3072, (u % 6) * SLOT), f"K{u}", smov(sG, u * SLOT))

    def ldV(u):
        issue(dma3(voffV, srdV, sG, sW3072, VRING + ((u + 1) % 6) * SLOT), f"V{u}", smov(sG, u * SLOT))

    QORD = [X, 0, 1, 2, 3]
    D = cfg.D

    def ldQ(t, i):
        setg = salu("s_add_u32", sG, sT3, (2 * t + i) * 3072)
        issue(dma3(Eo if i else E, srdQ, sG, sW3072, (2 + t + 6 * i) * SLOT), f"Q{t}", setg)

    def ldX():
        issue(dma3(voffK, srdQ, sG, sW3072, 12 * SLOT), f"Q{X}", smov(sG, 256 * 384))

    dq = [(lambda: ldK(0), None), (ldX, None)]
    for t in range(4):
        dq += [(lambda t=t: ldQ(t, 0), None), (lambda t=t: ldQ(t, 1), None)]
    for g in range(D):
        need = g - 1 if 1 <= g <= 4 else None
        dq += [(lambda g=g: ldK(g + 1), need), (lambda g=g: ldV(g), need)]
    consumed = set()

    def pump(k):
        for _ in range(k):
            if dq:
                fn, need = dq[0]
                assert need is None or need in consumed, need
                dq.pop(0)
                fn()

    if cfg.xdelay:
        a(smov(sU, cfg.xdelay))
        a(label("L_spin"))
        a(nop(13))
        a(salu("s_sub_u32", sU, sU, 1))
        a(scmp("s_cmp_lg_u32", sU, 0))
        a(branch("s_cbranch_scc1", "L_spin", ["scc"]))
    if cfg.xload:
        a(raw("s_load_dwordx2 s[28:29], s[0:1], 40", "smem", [], ["s28", "s29"]))
        a(smov(srdW[2], 0x10000000))
        a(smov(srdW[3], 0x20000))
        a(salu("s_mul_i32", sG, S(2), cfg.xload * SLOT, scc=False))
        a(smov(sU, cfg.xload))
        a(wait(lgkm=0))
        a(label("L_xl"))
        for m_, d_ in dma3(voffK, srdW, sG, sW3072, 0):
            a(m_)
            a(d_)
        a(salu("s_add_u32", sG, sG, SLOT))
        a(salu("s_sub_u32", sU, sU, 1))
        a(scmp("s_cmp_lg_u32", sU, 0))
        a(branch("s_cbranch_scc1", "L_xl", ["scc"]))
        a(wait(vm=0))
    pump(4)
    a(smov(sC2[0], f32bits(CSCALE)))
    a(smov(sC2[1], f32bits(CSCALE)))
    a(smov(sTHR, f32bits(cfg.thr)))
    a(smov(sPOS, SLOT))
    a(smov(sD, SLOT))
    a(smov(sU, 0))
    a(salu("s_add_u32", sDMA, sW3072, ((D + 1) % 6) * SLOT))
    r16, cg, t1, t2 = T[10], T[11], T[12], T[13]
    a(valu("v_and_b32", r16, 15, vL))
    a(valu("v_lshrrev_b32", cg, 4, vL))
    a(valu("v_and_b32", t1, 7, r16))
    a(valu("v_lshlrev_b32", t1, 7, t1))
    a(valu("v_lshrrev_b32", t2, 1, r16))
    a(valu("v_xor_b32", t2, t2, cg))
    a(valu("v_lshl_add_u32", t1, t2, 4, t1))
    a(valu("v_lshrrev_b32", t2, 3, r16))
    a(valu("v_mul_u32_u24", vK[0], 3072, t2))
    a(valu("v_add_u32", vK[0], vK[0], t1))
    a(valu("v_xor_b32", vK[1], 64, vK[0]))
    vQs = [T[14], T[15], T[16], T[17]]
    a(valu("v_mul_u32_u24", vQs[0], 6 * SLOT, t2))
    a(valu("v_add_u32", vQs[0], vQs[0], t1))
    a(salu("s_add_u32", sT0, sW3072, 2 * SLOT))
    a(valu("v_add_u32", vQs[0], sT0, vQs[0]))
    a(valu("v_xor_b32", vQs[1], 64, vQs[0]))
    a(salu("s_add_u32", sT0, sT2, 12 * SLOT))
    a(valu("v_add_u32", vQs[2], sT0, vK[0]))
    a(valu("v_add_u32", vQs[3], sT0, vK[1]))
    a(valu("v_bfe_u32", t1, vL, 2, 3))
    a(valu("v_lshlrev_b32", t2, 7, t1))
    a(valu("v_lshrrev_b32", t1, 1, t1))
    a(valu("v_lshl_add_u32", t2, t1, 5, t2))
    a(valu("v_and_b32", t1, 3, vL))
    a(valu("v_lshl_add_u32", t2, t1, 3, t2))
    a(valu("v_lshrrev_b32", t1, 5, vL))
    a(valu("v_mul_u32_u24", t1, 3072, t1))
    a(valu("v_add_u32", t2, t2, t1))
    a(valu("v_add_u32", vV[0], VRING + SLOT, t2))
    for i in range(1, 4):
        a(valu("v_xor_b32", vV[i], i << 5, vV[0]))
    Z = V(TE[0].i, 4)
    for i in range(4):
        a(valu("v_mov_b32", Z[i], 0))
    for t in range(5):
        a(valu("v_mov_b32", L[t], 0))
    for g in [V(64 + 16 * i, 16) for i in range(4)] + [A(120 + 16 * i, 16) for i in range(7)]:
        a(mfma32(g, Z, Z, 0))
    KF = ([S1["a"][2][0:4], S1["a"][2][4:8], S1["a"][3][0:4], S1["a"][3][4:8], P0["b"][0], P0["b"][1], P1[2], P1[3]]
          + F[2:6])
    pump(cfg.lead - 4)
    a(wait(vm=vmwait("K0", f"Q{X}")))
    a(barrier())
    pro += stamp()
    RAW = [V(4 * i, 4) for i in range(6)]
    UT = [V(24 + 2 * i, 2) for i in range(4)]
    Sdst = {0: S0[0], 1: S0[1], X: SX, 2: S1["b"][2], 3: S1["b"][3]}
    for t in QORD:
        if t != X:
            pro.extend(stamp())
            a(wait(vm=vmwait(f"Q{t}")))
            pro.extend(stamp())
        for ks in range(6):
            if t == X:
                a(dsr128(RAW[ks], vQs[2 + ks % 2], (ks // 2) * 1024))
            else:
                a(dsr128(RAW[ks], vQs[ks % 2], t * SLOT + (ks // 2) * 1024))
        if t == X:
            for i in range(12):
                a(kfrag(i, KF[i]))
            for i in range(2):
                a(valu("v_add_u32", vK[i], sPOS, vK[i]))
        pump(1)
        for ks in range(6):
            for r in range(4):
                u2 = UT[r]
                a(valu("v_lshlrev_b32", u2[0], 16, RAW[ks][r]))
                a(valu("v_and_b32", u2[1], 0xFFFF0000, RAW[ks][r]))
            for r in range(4):
                a(valu("v_pk_mul_f32", UT[r], UT[r], sC2))
            for r in range(4):
                a(valu("v_cvt_pk_bf16_f32", UT[r][0], UT[r][0], UT[r][1]))
            for r in range(4):
                a(valu("v_accvgpr_write_b32", Q[t][ks][r], UT[r][0]))
            if ks >= 1:
                for kt in range(2):
                    Dd = Sdst[t][4 * kt:4 * kt + 4]
                    a(mfma16(Dd, KF[6 * kt + ks - 1], Q[t][ks - 1], 0 if ks == 1 else Dd))
        consumed.add(t)
        for kt in range(2):
            Dd = Sdst[t][4 * kt:4 * kt + 4]
            a(mfma16(Dd, KF[6 * kt + 5], Q[t][5], Dd))
        pump(1)
        if t == QORD[-1]:
            for i in range(4):
                a(valu("v_mov_b32", Z[i], 0))
            for g in [V(16 * i, 16) for i in range(2)]:
                a(mfma32(g, Z, Z, 0))
        m_, tt_ = TE[4], TE[5]
        pro += rowmax8(Sdst[t], m_, tt_)
        for i in range(8):
            a(valu("v_sub_f32", Sdst[t][i], Sdst[t][i], m_))
        for i in range(4):
            a(valu("v_sub_f32", NM[t][i], 0, m_))
        if t in (0, 1):
            pro += sm_tile(S0[t], P0["a"][t], L[t])
        if t == X:
            pro += sm_half(SX, PX, 0, PSX, True)
    pro += stamp()
    a(wait(vm=vmwait("K1", "V0")))
    a(barrier())
    pro += stamp()
    a(kfrag(0, F[0]))
    a(kfrag(1, F[1]))
    pump(100)
    assert vmwait("K1", "V0") == 6 * (D - 1)
    for g in [V(32 + 16 * i, 16) for i in range(2)]:
        a(mfma32(g, Z, Z, 0))
    a(valu("v_add_u32", voffK, SLOT, voffK))
    a(smov(sG, D * SLOT))
    a(scmp("s_cmp_lg_u32", sWodd, 0))
    a(branch("s_cbranch_scc1", "L_enterB", ["scc"]))
    pro, pend = finalize2(pro, log=logs)
    assert pend[-2:] == ENTRY_PEND, pend
    proB = [label("L_enterB")]
    for t in (2, 3):
        for i in range(8):
            proB.append(valu("v_mov_b32", S1["a"][t][i], S1["b"][t][i]))
    for t in (0, 1):
        for i in range(4):
            proB.append(valu("v_mov_b32", P0["b"][t][i], P0["a"][t][i]))
    proB.append(branch("s_branch", "L_B"))
    proB, _ = finalize2(proB, hist=pro[-30:], log=logs)

    slow_blocks = []

    def slow(name, ret, items):
        o = [label(name), nop(16)]
        for t, Sr, Pr, ps, Sn in items:
            d, f, tmp = TE[0], TE[1], TE[2]
            o += rowmax8(Sr, d, tmp)
            o.append(valu("v_max_f32", d, 0, d))
            o.append(valu("v_sub_f32", f, 0, d))
            o.append(trans("v_exp_f32", f, f))
            for i in range(4):
                o.append(valu("v_sub_f32", NM[t][i], NM[t][i], d))
            for i in range(8):
                o.append(valu("v_sub_f32", Sr[i], Sr[i], d))
            if Sn is not None:
                for i in range(8):
                    o.append(valu("v_sub_f32", Sn[i], Sn[i], d))
            o.append(valu("v_mul_f32", L[t], f, L[t]))
            for g in O[t]:
                for i in range(4):
                    r = g[i]
                    if r.f == "v":
                        o.append(valu("v_mul_f32", r, f, r))
                    else:
                        tq = TE[2 + i % 2]
                        o.append(valu("v_accvgpr_read_b32", tq, r))
                        o.append(valu("v_mul_f32", tq, f, tq))
                        o.append(valu("v_accvgpr_write_b32", r, tq))
            o += sm_tile(Sr, Pr, ps)
        o.append(nop(4))
        o.append(branch("s_branch", ret))
        o, _ = finalize2(o)
        slow_blocks.append(o)

    def chk(pss):
        t = TE[tctr[0] % len(TE)]
        tctr[0] += 1
        o = [valu("v_max3_f32", t, *pss) if len(pss) == 3 else valu("v_max_f32", t, *pss)]
        o.append(valu("v_cmp_lt_f32", "vcc", sTHR, t))
        return o

    def block(B):
        isA = B == "A"
        sw, sr = ("a", "b") if isA else ("b", "a")
        pr, pw = ("a", "b") if isA else ("b", "a")
        Sw = {0: S0[0], 1: S0[1], 2: S1[sw][2], 3: S1[sw][3], X: SX}
        Pr = {0: P0[pr][0], 1: P0[pr][1], 2: P1[2], 3: P1[3], X: PX}
        qt = [0, 1, 2, 3] + ([] if isA else [X])
        pt = [0, 1, 2, 3] + ([X] if isA else [])
        mf, kpos, kend, last = [], {}, {}, {}
        for i in range(12):
            kt, ks = i // 6, i % 6
            kpos[i] = len(mf)
            for t in qt:
                Dd = Sw[t][4 * kt:4 * kt + 4]
                last[(t, kt)] = len(mf)
                mf.append(mfma16(Dd, F[i % 3], Q[t][ks], NM[t] if ks == 0 else Dd))
            kend[i] = len(mf)
        nq = len(mf)
        vb = lambda db: [F[3], F[4], F[5], F[2]][db % 4]
        vpos, vend = {}, {}
        for db in range(12):
            vpos[db] = len(mf)
            for t in pt:
                mf.append(mfma16(O[t][db], vb(db), Pr[t], O[t][db]))
            vend[db] = len(mf)
        n = len(mf)
        sc = Sched(mf)
        gb = n - cfg.barback
        for i in range(1, 12):
            sc.wres[kpos[i]] = True
        for db in range(12):
            if vpos[db] < gb:
                sc.wres[vpos[db]] = True
        assert not sc.wres[gb]
        sc.wres[n] = True
        sc.put_vec_from(1, [kfrag(2, F[2])])
        for i in range(3, 12):
            sc.put_vec_from(kend[i - 3], [kfrag(i, F[i % 3])])
        for db in range(3):
            sc.put_vec_from(kpos[9 + db] + 1, vfrag(db, vb(db)))
        sc.put_vec_from(nq, vfrag(3, vb(3)))
        gl = 0
        for db in range(4, 12):
            gl = sc.put_vec_from(vend[db - 4], vfrag(db, vb(db)))
        assert gl < gb
        if cfg.inner == 1:
            sc.put_sc(gb, *stamp())
        sc.put_sc(gb, wait(vm=6 * (D - 1), lgkm=0), barrier())
        if cfg.inner == 1:
            sc.put_sc(gb, *stamp())
        if cfg.inner == 2 and cfg.stamps:
            st_ = stamp()
            sc.put_sc(gb, st_[1], st_[4], st_[3], st_[0])
        sc.put_vec_from(gb, [kfrag(0, F[0]), kfrag(1, F[1])])
        dmask = sum(1 << u for u in range(32) if (u + D + 1) % 6 == 5)
        g = sc.put_sc_from(1, [scmp("s_bitcmp1_b32", 0x10410, sU),
                               salu("s_cselect_b32", sD, (-5 * SLOT) & 0xFFFFFFFF, sPOS, scc=False, rd_scc=True),
                               scmp("s_bitcmp1_b32", dmask, sU),
                               salu("s_cselect_b32", sDo, (-5 * SLOT) & 0xFFFFFFFF, sPOS, scc=False, rd_scc=True)])
        dm = dma3(voffK, srdK, sG, sDMA, 0) + dma3(voffV, srdV, sG, sDMA, VRING)
        d0, d1 = (nq + 4, gb - 6) if isA else (g + 2, nq - 16)
        if cfg.dlate == 1:
            d0, d1 = (g + 2, nq - 10)
        if cfg.dlate == 2:
            d0, d1 = (nq - 6, nq + 24) if isA else (nq - 30, nq - 2)
        if cfg.dlate == 4:
            d0, d1 = (nq + 22, gb - 5) if isA else (nq - 20, nq - 3)
        if cfg.dlate == 5:
            d0, d1 = (nq + 32, gb - 5) if isA else (nq - 12, nq + 12)
        if cfg.dlate == 6:
            d0, d1 = gb - 4 - cfg.dwin, gb - 5
        if cfg.dlate == 3:
            d0, d1 = (30, gb - 8) if isA else (g + 2, nq + 10)
        for k, (m_, d_) in enumerate(dm):
            g = max(d0 + (d1 - d0) * k // 5, g + 2 if k else 0)
            while not (sc.sc_free(g) and sc.free(g + 1) >= 2 and g != nq + 2):
                g += 1
            sc.put_sc(g, m_)
            sc.put_vec(g + 1, d_)
        assert g + 1 < gb
        sc.wres[nq + 2] = True
        g = sc.put_sc_from(g + 2, [salu("s_add_u32", sDMA, sDMA, sDo), salu("s_add_u32", sG, sG, SLOT),
                                   scmp("s_cmp_ge_u32", sU, 15 - D),
                                   salu("s_cselect_b32", sDMA, LDS_BYTES, sDMA, scc=False, rd_scc=True),
                                   salu("s_add_u32", sU, sU, 1)], gmax=n - 4)
        gc1 = nq + 2
        sc.wres[gc1] = False
        assert sc.sc_free(gc1)
        sc.put_sc(gc1, branch("s_cbranch_vccnz", f"L_slow1{B}", ["vcc"]), label(f"L_ret1{B}"))
        gc0 = n - 2
        assert sc.sc_free(gc0) and gc0 >= vpos[11] + 2
        sc.put_sc(gc0, branch("s_cbranch_vccnz", f"L_slow0{B}", ["vcc"]), label(f"L_ret0{B}"))
        sc.put_vec(gc0, valu("v_add_f32", L[0], L[0], PSZ), valu("v_add_f32", L[1], L[1], PS[1]))
        assert sc.sc_free(n - 1)
        sc.put_sc(n - 1, scmp("s_cmp_eq_u32", sU, 15))
        sc.tail[n].append(branch("s_cbranch_scc1", "L_tailB" if isA else "L_tailA", ["scc"]))
        if not isA:
            sc.tail[n].append(branch("s_branch", "L_A"))
        st1 = sm_tile(S1[sr][2], P1[2], PS[0]) + sm_tile(S1[sr][3], P1[3], PS[1])
        if isA:
            st1 += sm_half(SX, PX, 1, PSX, False) + chk([PS[0], PS[1], PSX])
        else:
            st1 += chk([PS[0], PS[1]]) + sm_half(SX, PX, 0, PSX, True, last[(X, 0)] + 5)
            st1 += sm_half(S0[0], P0[pw][0], 0, PSZ, True, last[(0, 0)] + 5)
        e1, x1 = sc.fill(st1, 1, gc1 - 1, name=f"{B}.st1")
        items = [(t, S1[sr][t], P1[t], PS[t - 2], S1[sw][t]) for t in (2, 3)]
        if isA:
            items.append((X, SX, PX, PSX, None))
        slow(f"L_slow1{B}", f"L_ret1{B}", items)
        st0 = [valu("v_add_f32", L[2], L[2], PS[0]), valu("v_add_f32", L[3], L[3], PS[1])]
        if isA:
            st0.append(valu("v_add_f32", L[X], L[X], PSX))
        st0 += [valu("v_add_u32", x, sD, x) for x in vK]
        if isA:
            st0 += sm_half(S0[0], P0[pw][0], 0, PSZ, True)
        st0 += sm_half(S0[1], P0[pw][1], 0, PS[1], True)
        st0 += sm_half(S0[0], P0[pw][0], 1, PSZ, False) + sm_half(S0[1], P0[pw][1], 1, PS[1], False)
        st0 += chk([PSZ, PS[1]])
        adv = [valu("v_add_u32", x, sD, x) for x in vV]
        sc.put_vec_from(n - 1, adv[0:2])
        for i in adv[2:4]:
            i.earliest = gl + 1
        e0, x0 = sc.fill(st0 + adv[2:4], gc1, gc0 - 1, name=f"{B}.st0")
        slow(f"L_slow0{B}", f"L_ret0{B}", [(t, S0[t], P0[pw][t], (PSZ, PS[1])[t], None) for t in (0, 1)])
        logs.append(f"block {B}: st1 ends gap {e1}/{gc1 - 1} (+{x1} overfull), st0 ends {e0}/{gc0 - 1} (+{x0})")
        if cfg.xnop:
            for g_ in range(cfg.xnop // 2, n - 1, cfg.xnop):
                sc.tail[g_].append(nop(4))
        seq = [label(f"L_{B}")] + sc.emit()
        k = max(i for i, x in enumerate(seq) if x.kind in MFMA_KINDS)
        seq.insert(k + 1, wait(lgkm=1))
        out, pend = finalize2(seq, pend=ENTRY_PEND[1:], log=logs)
        assert pend[-1:] == ENTRY_PEND[1:], pend
        return out

    blkA = block("A")
    blkB = block("B")
    pro[-2:-2] = [wait(lgkm=1)]

    VF = [A(4 * db, 4) for db in range(12)]

    def tail(B):
        isA = B == "A"
        sr, sd = ("b", "a") if isA else ("a", "b")
        pr, pd = ("a", "b") if isA else ("b", "a")
        free = [S0[0][i] for i in range(8)] + [S0[1][i] for i in range(8)]
        lane, q16, gq, t1, t2, t3 = free[0:6]
        INV = {0: V(free[6].i, 2), 1: V(free[8].i, 2), 2: V(free[6].i, 2), 3: V(free[8].i, 2)}
        wa = free[10:14]
        ra, so = free[14], free[15]
        f2 = [S1[sd][2][i] for i in range(8)] + [S1[sd][3][i] for i in range(8)]
        TMP = [V(f2[4 * i].i, 4) for i in range(2)]
        xw, xr, ma = f2[8], f2[9], f2[10]
        ml = V(f2[12].i, 2)
        MLo = [V(P0[pd][0].i, 2), V(P0[pd][0].i + 2, 2)]
        W = []
        a = W.append
        ready = []

        def inv_of(t):
            return allrows("v_add_f32", L[t], t1) + [trans("v_rcp_f32", INV[t][0], L[t])]

        def epi(t, db):
            o = []
            g = O[t][db]
            src = g
            if g.f == "a":
                src = TMP[db % 2]
                for i in range(4):
                    o.append(valu("v_accvgpr_read_b32", src[i], g[i]))
            o.append(valu("v_pk_mul_f32", src[0:2], src[0:2], INV[t], extra="op_sel_hi:[1,0]"))
            o.append(valu("v_pk_mul_f32", src[2:4], src[2:4], INV[t], extra="op_sel_hi:[1,0]"))
            o.append(valu("v_cvt_pk_bf16_f32", src[0], src[0], src[1]))
            o.append(valu("v_cvt_pk_bf16_f32", src[1], src[2], src[3]))
            o.append(dsw64(wa[db % 4], src[0:2], t * 6144 + (db // 4) * 128))
            return o

        DREG = {0: lambda ln, hf: V(16 * ln + 4 * hf, 4), 1: lambda ln, hf: V(48 + 16 * ln + 4 * hf, 4),
                2: lambda ln, hf: V(16 * ln + 8 + 4 * hf, 4), 3: lambda ln, hf: V(48 + 16 * ln + 8 + 4 * hf, 4)}

        def line_out(t, ln):
            o = []
            for hf in range(2):
                off = t * 6144 + hf * 3072 + ln * 128
                d = DREG[t](ln, hf)
                o.append(dsr128(d, ra, off))
                st_ = vstore(d, so, srdO, sT3, off & 4095, cfg.st)
                o.append(("store", [smov(sT3, off & ~4095)] + ([] if cfg.nostore else [st_])))
            return o

        def tile_out(t, mf=()):
            mf = list(mf)
            o = []
            for db in range(12):
                e = epi(t, db)
                if mf:
                    o.append(mf.pop(0))
                o += e[:3]
                if mf and len(mf) > 12 - db:
                    o.append(mf.pop(0))
                o += e[3:]
                if db % 4 == 3:
                    o += line_out(t, db // 4)
            return o + mf

        def pv(t, P):
            return [mfma16(O[t][db], VF[db], P, O[t][db]) for db in range(12)]

        W += stamp()
        for db in range(6):
            W += vfrag(db, VF[db])
        a(valu("v_mbcnt_lo_u32_b32", lane, -1, 0))
        a(valu("v_mbcnt_hi_u32_b32", lane, -1, lane))
        a(valu("v_mov_b32", t1, L[0]))
        a(valu("v_and_b32", q16, 15, lane))
        a(valu("v_lshrrev_b32", gq, 4, lane))
        a(swap16(L[0], t1))
        a(valu("v_add_f32", L[0], L[0], t1))
        a(salu("s_mul_i32", sT0, sW, 24576, scc=False))
        a(valu("v_mov_b32", t1, L[0]))
        a(valu("v_mul_u32_u24", t2, 384, q16))
        a(valu("v_and_b32", t3, 7, q16))
        a(swap32(L[0], t1))
        a(valu("v_add_f32", L[0], L[0], t1))
        a(valu("v_lshrrev_b32", t1, 1, gq))
        a(trans("v_rcp_f32", INV[0][0], L[0]))
        m0 = pv(0, P0[pr][0])
        rest = [valu("v_xor_b32", t3, t3, t1), valu("v_lshl_add_u32", t2, t3, 4, t2), valu("v_and_b32", t3, 1, gq),
                valu("v_lshl_add_u32", t2, t3, 3, t2), valu("v_add_u32", wa[0], sT0, t2)]
        rest += [valu("v_xor_b32", wa[i], i << 5, wa[0]) for i in range(1, 4)]
        rest += [valu("v_lshrrev_b32", t1, 3, lane), valu("v_and_b32", t2, 7, lane),
                 valu("v_mul_u32_u24", t3, 384, t1), valu("v_add_u32", t3, sT0, t3),
                 valu("v_lshl_add_u32", so, t2, 4, t3), valu("v_xor_b32", t2, t2, t1),
                 valu("v_lshl_add_u32", ra, t2, 4, t3)]
        vr = []
        for db in range(6, 12):
            vr += vfrag(db, VF[db])
        for k in range(6):
            a(m0[k])
            W += vr[2 * k:2 * k + 2]
            W += rest[3 * k:3 * k + 3]
        W += tile_out(0, m0[6:] + pv(1, P0[pr][1]))
        W += stamp() if cfg.tstamps else []
        W += inv_of(1)
        W += tile_out(1)
        W += stamp() if cfg.tstamps else []
        sm = []
        if isA:
            sm += sm_half(SX, PX, 1, PSX, False)
        sm += sm_tile(S1[sr][2], P1[2], PS[0]) + sm_tile(S1[sr][3], P1[3], PS[1])
        sm += chk([PS[0], PS[1], PSX] if isA else [PS[0], PS[1]])
        W += sm
        W += [branch("s_cbranch_vccnz", f"L_slowT{B}", ["vcc"]), label(f"L_retT{B}"),
              valu("v_add_f32", L[2], L[2], PS[0]), valu("v_add_f32", L[3], L[3], PS[1])]
        items = [(t, S1[sr][t], P1[t], PS[t - 2], None) for t in (2, 3)]
        if isA:
            a(valu("v_add_f32", L[X], L[X], PSX))
            items.append((X, SX, PX, PSX, None))
        slow(f"L_slowT{B}", f"L_retT{B}", items)
        W += stamp() if cfg.tstamps else []
        m2 = pv(2, P1[2])
        i2 = inv_of(2)
        xs = [salu("s_lshr_b32", sT1, sW, 1), salu("s_mul_i32", sT2, sT1, 3 * SLOT, scc=False),
              salu("s_add_u32", sT2, sT2, 8 * SLOT + (SLOT if isA else 0)), valu("v_lshl_add_u32", xw, lane, 4, sT2),
              valu("v_add_u32", xr, (6144 - SLOT) if isA else 0, xw),
              salu("s_lshl_b32", sT2, sT1, 8), salu("s_add_u32", sT2, sT2, MLBASE),
              valu("v_lshl_add_u32", ma, q16, 3, sT2)]
        fl = i2 + xs
        for k in range(6):
            a(m2[k])
            W += fl[3 * k:3 * k + 3]
        W += tile_out(2, m2[6:] + (pv(X, PX) if isA else []) + pv(3, P1[3]))
        W += stamp() if cfg.tstamps else []
        for db in range(12):
            a(dsw128(xw, O[X][db], db * 1024))
        W += allrows("v_add_f32", L[X], t1)
        a(valu("v_mov_b32", ml[0], NM[X][0]))
        a(valu("v_mov_b32", ml[1], L[X]))
        a(dsw64(ma, ml, 128 if isA else 0))
        W += stamp() if cfg.tstamps else []
        W += inv_of(3)
        W += tile_out(3)
        W += stamp() if cfg.tstamps else []
        a(wait(lgkm=0))
        a(barrier())
        W += stamp() if cfg.tstamps else []
        XS = [[V(96 + 4 * k, 4) for k in range(6)], [V(S1[sr][2].i + 4 * k, 4) for k in range(4)] + [P1[2], P1[3]]]
        for s_ in range(2):
            a(dsr64(MLo[s_], ma, s_ * 128))
        for s_ in range(2):
            for k in range(6):
                a(dsr128(XS[s_][k], xr, s_ * SLOT + k * 1024))
        a(valu("v_min_f32", t1, MLo[0][0], MLo[1][0]))
        for s_ in range(2):
            a(valu("v_sub_f32", MLo[s_][0], t1, MLo[s_][0]))
        for s_ in range(2):
            a(trans("v_exp_f32", MLo[s_][0], MLo[s_][0]))
        a(valu("v_mul_u32_u24", t3, 384, q16))
        a(valu("v_mul_f32", t2, MLo[0][0], MLo[0][1]))
        a(valu("v_fma_f32", t2, MLo[1][0], MLo[1][1], t2))
        a(trans("v_rcp_f32", t2, t2))
        a(valu("v_and_b32", t1, 1, gq))
        a(valu("v_lshl_add_u32", t3, t1, 5, t3))
        a(valu("v_lshrrev_b32", t1, 1, gq))
        a(valu("v_lshl_add_u32", t3, t1, 4, t3))
        for s_ in range(2):
            a(valu("v_mul_f32", MLo[s_][0], MLo[s_][0], t2))
        a(salu("s_mul_i32", sT1, sT1, 6144, scc=False))
        a(salu("s_add_u32", sT1, sT1, 256 * 384 + (192 if isA else 0)))
        for kp in range(3):
            for k in (2 * kp, 2 * kp + 1):
                for h in range(2):
                    x0, x1 = XS[0][k][2 * h:2 * h + 2], XS[1][k][2 * h:2 * h + 2]
                    a(valu("v_pk_mul_f32", x0, x0, MLo[0], extra="op_sel_hi:[1,0]"))
                    a(valu("v_pk_fma_f32", x0, x1, MLo[1], x0, extra="op_sel_hi:[1,0,1]"))
            dq = XS[1][2 * kp]
            g0, g1 = XS[0][2 * kp], XS[0][2 * kp + 1]
            a(valu("v_cvt_pk_bf16_f32", dq[0], g0[0], g0[1]))
            a(valu("v_cvt_pk_bf16_f32", dq[2], g1[0], g1[1]))
            a(valu("v_cvt_pk_bf16_f32", dq[1], g0[2], g0[3]))
            a(valu("v_cvt_pk_bf16_f32", dq[3], g1[2], g1[3]))
            a(swap16(dq[0], dq[2]))
            a(swap16(dq[1], dq[3]))
            a(vstore(dq, t3, srdO, sT1, kp * 64, cfg.stx))
        seq = [label(f"L_tail{B}")]
        pendst = []
        for it in W:
            if isinstance(it, tuple):
                pendst.append([cfg.sdist, it[1]])
                continue
            if it.kind in ("bar", "br") or (it.kind == "salu" and sT3.names()[0] in it.wr):
                pass
            seq.append(it)
            for p in pendst:
                p[0] -= 1
            if pendst and pendst[0][0] <= 0 and it.kind != "br":
                seq += pendst.pop(0)[1]
                for p in pendst:
                    p[0] = max(p[0], cfg.sgap)
        for p in pendst:
            seq += p[1]
        a = seq.append
        if cfg.stamps:
            seq += stamp()
            a(wait(vm=0))
            seq += stamp()
            a(raw(f"s_memrealtime {sST}", "smem", [], sST.names()))
            a(wait(lgkm=0))
            a(raw(f"v_writelane_b32 {X1}, {sST[0]}, 63", "valu", sST[0].names() + X1.names(), X1.names()))
            a(salu("s_lshl_b32", sT2, S(2), 2))
            a(salu("s_add_u32", sT2, sT2, sW))
            a(salu("s_lshl_b32", sT2, sT2, 8))
            a(valu("v_lshlrev_b32", t1, 2, lane))
            a(vstore(X1, t1, srdW, sT2, 0, "", op="buffer_store_dword"))
        if isA:
            a(label("L_end"))
        a(raw("s_endpgm", "br"))
        out, pend = finalize2(seq, pend=ENTRY_PEND[1:], hist=(blkB if isA else blkA)[-30:], log=logs)
        return out

    tailB = tail("B")
    tailA = tail("A")
    fin = []

    for blk in (pro, blkA, blkB, tailA, tailB, fin):
        lastw = None
        for i in blk:
            if "scc" in i.rd:
                ok = lastw is not None and (lastw.txt.startswith("s_cmp") or lastw.txt.startswith("s_bitcmp")
                                            or i.txt.startswith("s_addc"))
                assert ok, (lastw, i)
            if "scc" in i.wr:
                lastw = i
    bad = 0
    bad += check_path("pro-A-B", pro, blkA, blkB, blkA)
    bad += check_path("pro-B-A", pro, proB, blkB, blkA, blkB)
    bad += check_path("A-tailB-fin", blkA, tailB, fin)
    bad += check_path("B-tailA-fin", blkB, tailA, fin)
    assert bad == 0
    info = dict(A=est16(blkA), B=est16(blkB), nA=len(blkA), nB=len(blkB), pro=est16(pro),
                tailA=est16(tailA), tailB=est16(tailB), fin=est16(fin))

    body = pro + blkA + blkB + proB + tailB + tailA + fin
    for o in slow_blocks:
        body += o
    hdr = f"""; Flash-style attention forward, one workgroup (4 waves, one per SIMD, 512 registers) per (batch, head).
; Softmax: running reference max per row (true max of the keys seen when it was last set); every 32-key unit is
; checked and falls back to a rescale with the true running max when the partial sum leaves the safe range.
; @launch grid=(256,1,1) block=(256,1,1) lds={LDS_BYTES}
.amdgcn_target "amdgcn-amd-amdhsa--gfx950"
.text
.globl {KN}
.p2align 8
.type {KN},@function
{KN}:
"""
    ftr = f"""
.section .rodata,"a"
.p2align 6
.amdhsa_kernel {KN}
  .amdhsa_next_free_vgpr 512
  .amdhsa_next_free_sgpr 64
  .amdhsa_accum_offset 256
  .amdhsa_group_segment_fixed_size 0
  .amdhsa_kernarg_size 48
  .amdhsa_user_sgpr_count 2
  .amdhsa_user_sgpr_kernarg_segment_ptr 1
  .amdhsa_system_sgpr_workgroup_id_x 1
  .amdhsa_float_denorm_mode_32 3
.end_amdhsa_kernel
"""
    txt = hdr + "\n".join(("" if i.kind == "label" else "    ") + i.txt for i in body) + ftr
    return txt, info, logs


if __name__ == "__main__":
    out = sys.argv[1]
    cfg = Cfg()
    for kv in sys.argv[2:]:
        k, v = kv.split("=")
        cur = getattr(cfg, k)
        if isinstance(cur, bool):
            v = v in ("1", "true", "True")
        elif isinstance(cur, (int, float)):
            v = type(cur)(float(v))
        setattr(cfg, k, v)
    txt, info, logs = gen(cfg)
    open(out, "w").write(txt)
    print(info)
    for l in logs:
        if cfg.verbose or not l.startswith("pad"):
            print("  ", l)
```
